```python
import torch

def _softmax(x, axis=-1):
    return torch.softmax(x, dim=axis)
def _gelu(x):
    return torch.nn.functional.gelu(x, approximate="tanh")
def _silu(x):
    return torch.nn.functional.silu(x)
def _sigmoid(x):
    return torch.sigmoid(x)
def _layernorm(x, axis=-1, eps=1e-5):
    m = x.mean(dim=axis, keepdim=True)
    v = x.var(dim=axis, keepdim=True, unbiased=False)
    return (x - m) / torch.sqrt(v + eps)
def _scatter_add(tgt, idx, src, axis=0):
    return tgt.clone().index_add_(axis, idx, src)
def _segment_sum(src, seg, n):
    out = torch.zeros((n,) + src.shape[1:], dtype=src.dtype)
    return out.index_add_(0, seg, src)
def _pad(x, pw):
    flat = tuple(v for pair in reversed(pw) for v in pair)
    return torch.nn.functional.pad(x, flat)

kernel_name = 'parallel_sum__ssm_conv_s4d__geglu_ffn__prompt'

def setup_inputs():

    _w = (lambda a: (lambda t: t.to(torch.bfloat16) if t.is_floating_point() else t)(torch.as_tensor(a)))
    def _A_setup():
        Bsz, L, D, N = 1, 2048, 512, 128
        return {
            "u": _w((lambda *s: torch.randn(*s, dtype=torch.bfloat16) * 0.05)(Bsz, L, D)),
            "log_A_real": _w((lambda *s: torch.randn(*s, dtype=torch.bfloat16) * 3.2)(D, N) * 0.5),
            "A_imag": _w((lambda *s: torch.randn(*s, dtype=torch.bfloat16) * 0.1)(D, N) * 3.14),
            "C_real": _w((lambda *s: torch.randn(*s, dtype=torch.bfloat16) * 1.6)(D, N) / N ** 0.5),
            "C_imag": _w((lambda *s: torch.randn(*s, dtype=torch.bfloat16) * 1.6)(D, N) / N ** 0.5),
            "log_dt": _w((lambda *s: torch.randn(*s, dtype=torch.bfloat16) * 0.1)(D) * 0.5 - 4.0),
            "D_skip": _w((lambda *s: torch.randn(*s, dtype=torch.bfloat16) * 0.2)(D)),
        }
    _A_in = _A_setup()

    def _B_setup():
        B, S, D, F = 1, 2048, 512, 1376
        return {
            "x": _w((lambda *s: torch.randn(*s, dtype=torch.bfloat16) * 0.05)(B, S, D)),
            "w_gate": _w((lambda *s: torch.randn(*s, dtype=torch.bfloat16) * 0.05)(D, F)),
            "w_up": _w((lambda *s: torch.randn(*s, dtype=torch.bfloat16) * 0.05)(D, F)),
            "w_down": _w((lambda *s: torch.randn(*s, dtype=torch.bfloat16) * 0.05)(F, D)),
        }
    _B_in = _B_setup()

    return {
        "A_u": _A_in["u"],
        "A_log_A_real": _A_in["log_A_real"],
        "A_A_imag": _A_in["A_imag"],
        "A_C_real": _A_in["C_real"],
        "A_C_imag": _A_in["C_imag"],
        "A_log_dt": _A_in["log_dt"],
        "A_D_skip": _A_in["D_skip"],
        "B_x": _B_in["x"],
        "B_w_gate": _B_in["w_gate"],
        "B_w_up": _B_in["w_up"],
        "B_w_down": _B_in["w_down"],
    }

def reference(A_u, A_log_A_real, A_A_imag, A_C_real, A_C_imag, A_log_dt, A_D_skip, B_x, B_w_gate, B_w_up, B_w_down):
    def _A_ref(u, log_A_real, A_imag, C_real, C_imag, log_dt, D_skip):
        L = u.shape[1]
        dt = torch.exp(log_dt)
        A = -torch.exp(log_A_real) + 1j * A_imag
        C = (C_real + 1j * C_imag) * dt[:, None]
        pos = (lambda x, dt: x.to(dt))(torch.arange(L), log_dt.dtype)
        P = torch.exp((A * dt[:, None])[:, :, None] * pos[None, None, :])
        K = 2.0 * torch.einsum("dn,dnl->dl", C, P).real
        L2 = 2 * L
        u_t = (lambda x, *d: x.permute(*d))(u, 0, 2, 1)
        Kf = (lambda x, *a, **k: torch.fft.rfft(x.float(), *a, **k))(K, L2)
        Uf = (lambda x, *a, **k: torch.fft.rfft(x.float(), *a, **k))(u_t, L2)
        y = (lambda x, *a, **k: torch.fft.irfft(x, *a, **k).to(torch.bfloat16))(Uf * Kf[None, :, :], L2)[:, :, :L]
        y = (lambda x, *d: x.permute(*d))(y, 0, 2, 1)
        return y + u * D_skip[None, None, :]

    def _B_ref(x, w_gate, w_up, w_down):
        return (_gelu(x @ w_gate) * (x @ w_up)) @ w_down

    x = A_u
    xn = _layernorm(x, axis=-1)
    return x + _A_ref(xn, A_log_A_real, A_A_imag, A_C_real, A_C_imag, A_log_dt, A_D_skip) + _B_ref(xn, B_w_gate, B_w_up, B_w_down)
```

```python
import re

def _regs(tok):
    tok = tok.strip()
    tok = tok.lstrip('-')
    m = re.match(r'^(abs|neg)\((.*)\)$', tok)
    if m: tok = m.group(2)
    tok = tok.strip('|')
    m = re.match(r'^([vas])(\d+)$', tok)
    if m: return [(m.group(1), int(m.group(2)))]
    m = re.match(r'^([vas])\[(\d+):(\d+)\]$', tok)
    if m: return [(m.group(1), i) for i in range(int(m.group(2)), int(m.group(3)) + 1)]
    if tok == 'vcc': return [('s', 'vcc_lo'), ('s', 'vcc_hi')]
    if tok in ('vcc_lo', 'vcc_hi', 'm0', 'exec_lo', 'exec_hi'): return [('s', tok)]
    if tok == 'exec': return [('s', 'exec_lo'), ('s', 'exec_hi')]
    return []

TRANS = ('v_exp_f32', 'v_log_f32', 'v_rcp_f32', 'v_rsq_f32', 'v_sqrt_f32', 'v_sin_f32', 'v_cos_f32')

class Ins:
    def __init__(self, text):
        self.text = text
        t = text.split(';')[0].strip()
        self.label = t.endswith(':')
        self.directive = t.startswith('.')
        self.op = ''
        self.wr = set(); self.rd = set()
        self.kind = None
        if not t or self.label or self.directive: return
        parts = t.split(None, 1)
        op = parts[0]; self.op = op
        rest = parts[1] if len(parts) > 1 else ''
        ops = [o.strip() for o in rest.split(',')]
        toks = []
        for o in ops:
            sp = o.split()
            toks.append(sp[0] if sp else '')
        mods = rest
        self.mods = mods
        R = [_regs(x) for x in toks]
        def flat(l): return set(x for y in l for x in y)
        base = re.sub(r'_(e32|e64|dpp|sdwa)$', '', op)
        self.base = base
        if op.startswith('v_mfma'):
            self.kind = 'mfma'
            self.wr = set(R[0]); self.srcA = set(R[1]); self.srcB = set(R[2]); self.srcC = set(R[3])
            self.rd = self.srcA | self.srcB | self.srcC
            self.passes = 8 if '32x32x16' in op else 4
            self.dtok = toks[0]; self.ctok = toks[3]
        elif op.startswith('v_'):
            self.kind = 'valu'
            if base.startswith('v_cmp'):
                self.wr = set(R[0]); self.rd = flat(R[1:])
            elif base in ('v_readfirstlane_b32', 'v_readlane_b32'):
                self.wr = set(R[0]); self.rd = flat(R[1:])
            elif base.startswith('v_permlane') and 'swap' in base:
                self.wr = flat(R[0:2]); self.rd = flat(R[0:2])
            elif base in ('v_add_co_u32', 'v_sub_co_u32', 'v_addc_co_u32', 'v_subb_co_u32'):
                self.wr = flat(R[0:2]); self.rd = flat(R[2:])
            elif base in ('v_fmac_f32', 'v_dot2c_f32_bf16', 'v_pk_fmac_f16', 'v_writelane_b32'):
                self.wr = set(R[0]); self.rd = flat(R)
            elif base == 'v_nop':
                pass
            else:
                self.wr = set(R[0]); self.rd = flat(R[1:])
                if base == 'v_cndmask_b32' and len(toks) == 3: self.rd |= set(_regs('vcc'))
            self.trans = base in TRANS
            self.dot = base.startswith('v_dot')
            self.dpp = ('row_' in mods or 'quad_perm' in mods or 'wave_' in mods or op.endswith('_dpp'))
            if self.dpp: self.rd |= self.wr
        elif op.startswith('ds_'):
            self.kind = 'ds'
            if op.startswith('ds_write') or op.startswith('ds_add') and 'rtn' not in op:
                self.rd = flat(R)
            else:
                self.wr = set(R[0]); self.rd = flat(R[1:])
        elif op.startswith('buffer_') or op.startswith('global_'):
            self.kind = 'vmem'
            islds = bool(re.search(r'\blds\b', mods)) or '_lds_' in op
            self.lds = islds
            if 'store' in op or islds or op.startswith('buffer_wbl2') or op.startswith('buffer_inv') or 'atomic' in op:
                self.rd = flat(R)
                self.wide_store = ('store' in op) and ('x3' in op or 'x4' in op)
                if op.startswith('buffer_store'): self.sdata = set(R[0])
                elif op.startswith('global_store'): self.sdata = set(R[1])
                else: self.sdata = set()
            else:
                self.wr = set(R[0]); self.rd = flat(R[1:])
            if islds: self.rd.add(('s', 'm0'))
        elif op.startswith('s_'):
            self.kind = 'salu'
            if op.startswith(('s_cmp', 's_cbranch', 's_branch', 's_waitcnt', 's_barrier', 's_nop', 's_endpgm', 's_sleep', 's_setprio', 's_bitcmp')):
                self.rd = flat(R)
            else:
                self.wr = set(R[0]); self.rd = flat(R[1:])
                if 'saveexec' in op: self.wr |= set(_regs('exec'))
        else:
            raise ValueError('unknown instr: ' + text)

    def states(self):
        if self.op == 's_nop': return int(self.text.split(';')[0].split()[1], 0) + 1
        return 1

def need_states(p, c):
    n = 0
    vw = lambda s: set(x for x in s if x[0] in 'va')
    sw = lambda s: set(x for x in s if x[0] == 's')
    if p.kind == 'valu':
        pv = vw(p.wr); ps = sw(p.wr)
        if c.kind == 'mfma' and pv & c.rd: n = max(n, 3 if p.dot else 2)
        if c.kind == 'valu':
            if p.trans and not c.trans and pv & c.rd: n = max(n, 1)
            if p.dot and (pv & (c.rd | c.wr)):
                if c.base != p.base: n = max(n, 3)
                else:
                    toks = [o.strip().split()[0] for o in c.text.split(';')[0].split(None, 1)[1].split(',')]
                    ab = set(_regs(toks[1])) | set(_regs(toks[2]))
                    if pv & ab: n = max(n, 3)
            if c.base in ('v_readfirstlane_b32', 'v_readlane_b32') and pv & c.rd: n = max(n, 1)
            if c.dpp and pv & c.rd: n = max(n, 2)
            if c.base.startswith('v_permlane') and pv & c.rd: n = max(n, 2)
            if ps & c.rd: n = max(n, 4 if c.base in ('v_readlane_b32', 'v_writelane_b32') else 2)
            if ('op_sel' in p.mods and not p.base.startswith('v_pk') or 'dst_sel' in p.mods) and pv & (c.rd | c.wr): n = max(n, 1)
        if c.kind in ('vmem', 'ds') and p.dot and pv & c.rd: n = max(n, 3)
        if c.kind in ('vmem', 'ds') and p.trans and pv & c.rd: n = max(n, 1)
        if c.kind == 'vmem' and ps & c.rd: n = max(n, 5)
        if c.kind == 'salu' and ps & c.rd: n = max(n, 1)
    if p.kind == 'mfma':
        big = p.passes == 8
        if c.kind == 'mfma':
            if p.wr & (c.srcA | c.srcB): n = max(n, 12 if big else 8)
            if p.wr & c.srcC:
                if not (c.ctok == p.dtok and c.passes == p.passes): n = max(n, 10 if big else 6)
            elif p.wr & c.wr: n = max(n, 12 if big else 8)
        elif c.kind in ('valu', 'vmem', 'ds'):
            if p.wr & (c.rd | c.wr): n = max(n, 12 if big else 8)
            if c.kind == 'valu' and p.srcC & c.wr: n = max(n, 7 if big else 3)
    if p.kind == 'salu':
        if ('s', 'm0') in p.wr and c.kind == 'vmem' and getattr(c, 'lds', False): n = max(n, 1)
    if p.kind == 'vmem' and getattr(p, 'wide_store', False):
        if p.sdata & c.wr: n = max(n, 2 if c.kind in ('valu', 'mfma') else 1)
    return n

class Asm:
    def __init__(self):
        self.L = []
        self.vm_n = 0; self.lg_n = 0
        self.vm_done = 0; self.lg_done = 0
        self.nlabel = 0
    def raw(self, s): self.L.append(s)
    def c(self, s): self.L.append('; ' + s)
    def I(self, s):
        self.L.append('    ' + s)
        op = s.split()[0]
        if op.startswith(('buffer_', 'global_')):
            self.vm_n += 1; return ('vm', self.vm_n)
        if op.startswith('ds_'):
            self.lg_n += 1; return ('lg', self.lg_n)
        return None
    def wait(self, *toks):
        vm = max([t[1] for t in toks if t and t[0] == 'vm'], default=0)
        lg = max([t[1] for t in toks if t and t[0] == 'lg'], default=0)
        parts = []
        if vm > self.vm_done:
            n = min(self.vm_n - vm, 63); parts.append(f'vmcnt({n})'); self.vm_done = max(self.vm_done, self.vm_n - n)
        if lg > self.lg_done:
            n = min(self.lg_n - lg, 15); parts.append(f'lgkmcnt({n})'); self.lg_done = max(self.lg_done, self.lg_n - n)
        if parts: self.L.append('    s_waitcnt ' + ' '.join(parts))
    def wait_all(self, vm=True, lg=True):
        parts = []
        if vm: parts.append('vmcnt(0)'); self.vm_done = self.vm_n
        if lg: parts.append('lgkmcnt(0)'); self.lg_done = self.lg_n
        self.L.append('    s_waitcnt ' + ' '.join(parts))
    def label(self, name): self.L.append(name + ':')
    def newlabel(self, p='L'):
        self.nlabel += 1; return f'{p}_{self.nlabel}'
    def finish(self):
        out = []; hist = []
        nn = 0
        for line in self.L:
            s = line.strip()
            if not s or s.startswith(';'):
                out.append(line); continue
            ins = Ins(s)
            if ins.label or ins.directive:
                out.append(line); continue
            need = 0; dist = 0
            for p in reversed(hist):
                r = need_states(p, ins)
                need = max(need, r - dist)
                dist += p.states()
                if dist >= 20: break
            while need > 0:
                k = min(need, 16)
                nop = Ins(f's_nop {k-1}'); out.append(f'    s_nop {k-1}'); hist.append(nop); need -= k; nn += 1
            out.append(line); hist.append(ins)
            if len(hist) > 40: hist = hist[-40:]
        self.nops = nn
        return '\n'.join(out) + '\n'
```

```python
import sys, math, struct
from asmlib import Asm

NAME = 'parallel_sum__ssm_conv_s4d__geglu_ffn__prompt'
XT  = 1 << 20
HF  = 4 << 20
WDP = 12 << 20
AT  = 16 << 20
WSN = 32 << 20
OOB = 0x40000000
AREA = 40960

def f32(x): return '0x%08x' % struct.unpack('<I', struct.pack('<f', x))[0]

sW, sXCD, sIDX, sTT, sFT = 's3', 's4', 's5', 's6', 's7'
SRD_X, SRD_W, SRD_WS, SRD_WD, SRD_OUT = 's[8:11]', 's[12:15]', 's[44:47]', 's[48:51]', 's[52:55]'
sA = 's56'
vL = 'v1'

def prologue(a, end):
    a.I('s_cmp_ge_u32 s2, 256')
    a.I(f's_cbranch_scc1 {end}')
    a.I('s_load_dwordx16 s[16:31], s[0:1], 0')
    a.I('s_load_dwordx8 s[32:39], s[0:1], 64')
    a.I('s_load_dwordx4 s[40:43], s[0:1], 96')
    a.I('v_lshrrev_b32 v2, 6, v0')
    a.I(f'v_and_b32 {vL}, 63, v0')
    a.I(f'v_readfirstlane_b32 {sW}, v2')
    a.I(f's_and_b32 {sXCD}, s2, 7')
    a.I(f's_lshr_b32 {sIDX}, s2, 3')
    a.I(f's_and_b32 {sTT}, {sIDX}, 1')
    a.I(f's_lshl_b32 s57, {sXCD}, 1')
    a.I(f's_add_u32 {sTT}, {sTT}, s57')
    a.I(f's_lshr_b32 {sFT}, {sIDX}, 1')
    a.I(f's_mul_i32 {sA}, {sW}, {AREA}')
    a.I('s_waitcnt lgkmcnt(0)')
    def srd(b, lo, hi, n):
        a.I(f's_mov_b32 s{b}, s{lo}'); a.I(f's_mov_b32 s{b+1}, s{hi}')
        a.I(f's_mov_b32 s{b+2}, {n}'); a.I(f's_mov_b32 s{b+3}, 0x20000')
    srd(8, 16, 17, 2048 * 1024)
    a.I(f's_bitcmp1_b32 {sW}, 0')
    a.I('s_cselect_b32 s12, s34, s32'); a.I('s_cselect_b32 s13, s35, s33')
    a.I(f's_mov_b32 s14, {512 * 2752}'); a.I('s_mov_b32 s15, 0x20000')
    srd(44, 42, 43, WSN)
    srd(48, 36, 37, 1376 * 1024)
    srd(52, 38, 39, 2048 * 1024)

def rbf16(a, d, s):
    a.I(f'v_cvt_pk_bf16_f32 {d}, {s}, {s}')
    a.I(f'v_lshlrev_b32 {d}, 16, {d}')

def front(a, end):
    XF = 128
    ACC = 32
    WF = 208
    a.I(f's_cmp_eq_u32 {sFT}, 15')
    a.I('s_cbranch_scc1 L_spare')
    a.I(f'v_lshrrev_b32 v6, 4, {vL}')
    a.I(f'v_and_b32 v7, 7, {vL}')
    a.I('v_xor_b32 v7, v7, v6')
    a.I(f's_and_b32 s57, {sFT}, 1'); a.I('s_lshl_b32 s57, s57, 2')
    a.I('v_xor_b32 v7, s57, v7')
    a.I('v_lshlrev_b32 v7, 4, v7')
    a.I(f'v_lshrrev_b32 v6, 3, {vL}')
    a.I('v_lshl_add_u32 v2, v6, 10, v7')
    a.I('v_xor_b32 v3, 64, v2')
    a.I('v_add_u32 v4, 14336, v2')
    a.I('v_add_u32 v5, 21504, v3')
    a.I('v_add_u32 v3, 7168, v3')
    a.I(f's_lshl_b32 s58, {sTT}, 2'); a.I(f's_add_u32 s58, s58, {sW}'); a.I('s_lshl_b32 s60, s58, 15')
    a.I(f's_lshr_b32 s59, {sFT}, 1'); a.I('s_lshl_b32 s59, s59, 7')
    a.I('s_or_b32 s60, s60, s59')
    xt = []
    for p in range(8):
        a.I(f's_add_u32 m0, {sA}, {8192 + 4096 * p}')
        a.I(f's_xor_b32 s61, s60, {p << 7}')
        for q in range(4):
            t = a.I(f'buffer_load_dwordx4 v{2+q}, {SRD_X}, s61 offen offset:{q*1024} lds')
        xt.append(t)
    for i in range(3):
        a.I(f'v_add_u32 v6, {64*i}, {vL}')
        a.I('v_mul_u32_u24 v6, 43691, v6')
        a.I('v_lshrrev_b32 v6, 19, v6')
        a.I('v_mul_u32_u24 v6, 2560, v6')
        a.I(f'v_lshl_add_u32 v{10+i}, {vL}, 4, v6')
    a.I(f's_mul_i32 s62, {sFT}, 192'); a.I('s_min_u32 s62, s62, 2560')
    a.I(f's_lshr_b32 s63, {sW}, 1'); a.I('s_mul_i32 s63, s63, 44032'); a.I('s_add_u32 s63, s63, s62')
    wt = {}
    def wdma(c):
        slot = c % 12
        a.I(f's_xor_b32 s61, {sFT}, {c}')
        a.I(f's_add_u32 m0, {sA}, {2048 + 3072 * slot}')
        a.I('s_mul_i32 s61, s61, 88064')
        a.I('s_add_u32 s61, s61, s63')
        for i in range(3):
            wt[c] = a.I(f'buffer_load_dwordx4 v{10+i}, {SRD_W}, s61 offen offset:{i*1024} lds')
    wdma(0); wdma(1)
    a.I(f'v_and_b32 v17, 31, {vL}')
    a.I(f'v_lshrrev_b32 v18, 5, {vL}')
    a.I('v_bfe_u32 v6, v17, 1, 3')
    a.I('v_xor_b32 v6, v6, v18')
    a.I('v_lshlrev_b32 v6, 4, v6')
    a.I('v_lshl_add_u32 v6, v17, 7, v6')
    a.I(f's_add_u32 s61, {sA}, 8192')
    a.I('v_add_u32 v6, s61, v6')
    for j in range(1, 4): a.I(f'v_xor_b32 v{6+j}, {j << 5}, v6')
    a.I(f'v_bfe_u32 v19, {vL}, 2, 2')
    a.I('v_lshl_add_u32 v19, v18, 3, v19')
    a.I('v_mul_u32_u24 v13, 192, v19')
    a.I(f'v_bfe_u32 v19, {vL}, 4, 1')
    a.I('v_lshl_add_u32 v13, v19, 5, v13')
    a.I(f'v_and_b32 v20, 3, {vL}')
    a.I('v_lshl_add_u32 v13, v20, 3, v13')
    a.I('v_add_u32 v13, 2048, v13')
    for k in range(1, 4): a.I(f'v_add_u32 v{13+k}, {k * AREA}, v13')
    a.I('v_lshlrev_b32 v21, 6, v17'); a.I('v_lshl_add_u32 v21, v18, 4, v21'); a.I(f'v_add_u32 v21, {sA}, v21')
    a.I(f'v_bfe_u32 v22, {vL}, 2, 2'); a.I('v_lshl_add_u32 v22, v18, 3, v22'); a.I('v_lshlrev_b32 v22, 6, v22')
    a.I('v_lshl_add_u32 v22, v19, 5, v22'); a.I('v_lshl_add_u32 v22, v20, 3, v22'); a.I(f'v_add_u32 v22, {sA}, v22')
    a.I('v_lshlrev_b32 v23, 13, v18'); a.I('v_lshl_add_u32 v23, v17, 4, v23')
    a.I('s_lshl_b32 s64, s58, 15'); a.I(f's_lshl_b32 s65, {sFT}, 9'); a.I('s_add_u32 s64, s64, s65'); a.I(f's_add_u32 s64, s64, {XT}')
    a.I('s_add_u32 s65, s64, 512')
    a.I(f's_cmp_eq_u32 {sFT}, 14')
    a.I(f's_cselect_b32 s65, s65, {OOB}')
    a.I('s_mul_i32 s66, s58, 86'); a.I('s_lshr_b32 s67, s62, 5'); a.I('s_add_u32 s66, s66, s67'); a.I('s_lshl_b32 s66, s66, 10')
    a.I(f's_add_u32 s66, s66, {HF}'); a.I('s_add_u32 s67, s66, 4096')
    a.I(f's_cmp_eq_u32 {sFT}, 14')
    a.I(f's_cselect_b32 s66, {OOB}, s66')
    a.I('v_mov_b32 v24, 0'); a.I('v_mov_b32 v25, 0'); a.I('v_mov_b32 v26, 0x3f803f80')
    freed = {p: [] for p in range(8)}
    for i in range(2, 12): freed[(3072 * (i - 1) - 1) // 4096].append(i)
    for p in range(8):
        a.wait(xt[p])
        for j in range(4):
            s = 4 * p + j
            t = a.I(f'ds_read_b128 v[{XF+4*s}:{XF+4*s+3}], v{6+j} offset:{p*4096}')
        a.wait(t)
        for c in freed[p]: wdma(c)
        for r in range(16):
            x = XF + 16 * p + r
            a.I(f'v_dot2_f32_bf16 v24, v{x}, v26, v24')
            a.I(f'v_dot2_f32_bf16 v25, v{x}, v{x}, v25')
    a.I('v_mov_b32 v27, v24'); a.I('v_mov_b32 v28, v25')
    a.I('v_permlane32_swap_b32 v24, v27'); a.I('v_permlane32_swap_b32 v25, v28')
    a.I('v_add_f32 v24, v24, v27'); a.I('v_add_f32 v25, v25, v28')
    a.I(f'v_mul_f32 v24, {f32(1/512)}, v24')
    a.I(f'v_mul_f32 v25, {f32(1/512)}, v25')
    a.I('v_fma_f32 v25, -v24, v24, v25')
    a.I('v_max_f32 v25, 0, v25')
    rbf16(a, 'v24', 'v24'); rbf16(a, 'v25', 'v25')
    a.I(f'v_add_f32 v25, {f32(1e-5)}, v25'); rbf16(a, 'v25', 'v25')
    a.I('v_sqrt_f32 v25, v25'); rbf16(a, 'v25', 'v25')
    a.I('v_rcp_f32 v25, v25')
    a.I('v_mul_f32 v24, v24, v25'); a.I('v_sub_f32 v24, 0, v24')
    def norm(s):
        L = []
        for r in range(4):
            x = XF + 4 * s + r; t0 = 26 + 2 * (r & 1); t1 = t0 + 1
            L += [f'v_lshlrev_b32 v{t0}, 16, v{x}', f'v_and_b32 v{t1}, 0xffff0000, v{x}',
                  f'v_fma_f32 v{t0}, v{t0}, v25, v24', f'v_fma_f32 v{t1}, v{t1}, v25, v24',
                  f'v_cvt_pk_bf16_f32 v{x}, v{t0}, v{t1}']
        return L
    def reads(s):
        L = []
        c = s >> 1; slot = c % 12
        for sub in range(3):
            for mat in range(2):
                d = WF + 24 * (s & 1) + 4 * (sub * 2 + mat)
                for half in range(2):
                    L.append(f'ds_read_b64_tr_b16 a[{d+2*half}:{d+2*half+1}], v{13 + 2*(s&1) + mat} offset:{slot*3072 + half*768 + sub*64}')
        return L
    a.wait(wt[0]); a.I('s_barrier')
    for x in reads(0): a.I(x)
    for x in norm(0): a.I(x)
    XS = 2
    for s in range(32):
        extra = []
        if s in (1, 4):
            k = 0 if s == 1 else 2
            extra += [f'ds_write_b128 v21, v[{XF+4*(k+j)}:{XF+4*(k+j)+3}] offset:{32*j}' for j in range(2)]
        if s in (2, 5):
            extra += [f'ds_read_b64_tr_b16 v[{XS+4*i+2*hf}:{XS+4*i+2*hf+1}], v22 offset:{i*1024 + hf*256}' for i in range(2) for hf in range(2)]
        if s in (3, 6):
            so = 's64' if s == 3 else 's65'
            extra += [f'buffer_store_dwordx4 v[{XS}:{XS+3}], v23, {SRD_WS}, {so} offen sc1',
                      f's_add_u32 {so}, {so}, 16384',
                      f'buffer_store_dwordx4 v[{XS+4}:{XS+7}], v23, {SRD_WS}, {so} offen sc1']
        a.wait_all(vm=False)
        if s & 1 and s < 31:
            c = s >> 1
            a.wait(wt[c + 1]); a.I('s_barrier')
        rd = reads(s + 1) if s < 31 else []
        nm = norm(s + 1) if s < 31 else []
        nv = [2, 2, 2, 2, 6, 6]
        for i in range(6):
            sub, mat = i >> 1, i & 1
            d = ACC + 16 * i; af = WF + 24 * (s & 1) + 4 * i; xf = XF + 4 * s
            cc = '0' if s == 0 else f'v[{d}:{d+15}]'
            a.I(f'v_mfma_f32_32x32x16_bf16 v[{d}:{d+15}], a[{af}:{af+3}], v[{xf}:{xf+3}], {cc}')
            if i == 0:
                for x in extra: a.I(x)
            if i == 1 and s & 1 and (s >> 1) + 12 < 16: wdma((s >> 1) + 12)
            for x in rd[3*i:3*i+3]: a.I(x)
            k0 = sum(nv[:i])
            for x in nm[k0:k0+nv[i]]: a.I(x)
    c1 = -2.0 * math.sqrt(2.0 / math.pi) * math.log2(math.e); c2 = c1 * 0.044715
    a.I(f'v_mov_b32 v2, {f32(c1)}'); a.I('v_mov_b32 v3, v2'); a.I(f'v_mov_b32 v4, {f32(c2)}'); a.I('v_mov_b32 v5, v4')
    a.I('v_mov_b32 v6, 1.0'); a.I('v_mov_b32 v7, 1.0'); a.I(f'v_lshlrev_b32 v8, 4, {vL}')
    T = 128
    for sub in range(3):
        for ks in range(2):
            G = ACC + 32 * sub + 8 * ks; U = G + 16; t = T + 16 * (sub * 2 + ks); o = t + 8
            P = lambda b, n: f'v[{b+2*n}:{b+2*n+1}]'
            for n in range(4): a.I(f'v_pk_mul_f32 {P(t,n)}, {P(G,n)}, {P(G,n)}')
            for n in range(4): a.I(f'v_pk_fma_f32 {P(t,n)}, {P(t,n)}, v[4:5], v[2:3]')
            for n in range(4): a.I(f'v_pk_mul_f32 {P(t,n)}, {P(t,n)}, {P(G,n)}')
            for n in range(8): a.I(f'v_exp_f32 v{t+n}, v{t+n}')
            for n in range(4): a.I(f'v_pk_mul_f32 {P(G,n)}, {P(G,n)}, {P(U,n)}')
            for n in range(4): a.I(f'v_pk_add_f32 {P(t,n)}, {P(t,n)}, v[6:7]')
            for n in range(8): a.I(f'v_rcp_f32 v{t+n}, v{t+n}')
            for n in range(4): a.I(f'v_pk_mul_f32 {P(G,n)}, {P(G,n)}, {P(t,n)}')
            for n in range(4): a.I(f'v_cvt_pk_bf16_f32 v{o+n}, v{G+2*n}, v{G+2*n+1}')
            so, off = ('s66', (2 * sub + ks) * 1024) if sub < 2 else ('s67', ks * 1024)
            a.I(f'buffer_store_dwordx4 v[{o}:{o+3}], v8, {SRD_WS}, {so} offen offset:{off} sc1')
    a.I(f's_branch {end}')
    a.label('L_spare')
    a.I(f's_lshl_b32 s58, {sTT}, 2'); a.I(f's_add_u32 s58, s58, {sW}')
    a.I(f'v_lshlrev_b32 v2, 4, {vL}')
    a.I(f'v_lshrrev_b32 v3, 5, {vL}'); a.I(f'v_bfe_u32 v4, {vL}, 2, 2'); a.I('v_lshl_add_u32 v3, v3, 2, v4')
    a.I('v_mul_u32_u24 v3, 1088, v3')
    a.I(f'v_bfe_u32 v4, {vL}, 4, 1'); a.I('v_lshl_add_u32 v3, v4, 5, v3')
    a.I(f'v_and_b32 v4, 3, {vL}'); a.I('v_lshl_add_u32 v3, v4, 3, v3'); a.I(f'v_add_u32 v3, {sA}, v3')
    a.label('L_spare_loop')
    a.I('s_lshl_b32 s59, s58, 14')
    a.I(f's_mov_b32 m0, {sA}')
    for i in range(16):
        a.I(f'buffer_load_dwordx4 v2, {SRD_WD}, s59 offen lds')
        if i < 15:
            a.I('s_add_u32 m0, m0, 1088'); a.I('s_add_u32 s59, s59, 1024')
    a.wait_all()
    for cb in range(16):
        for hf in range(2):
            a.I(f'ds_read_b64_tr_b16 v[{32+4*cb+2*hf}:{32+4*cb+2*hf+1}], v3 offset:{hf*8*1088 + cb*64}')
    a.wait_all()
    a.I('s_lshl_b32 s59, s58, 10'); a.I(f's_add_u32 s59, s59, {WDP}')
    for cb in range(16):
        a.I(f'buffer_store_dwordx4 v[{32+4*cb}:{32+4*cb+3}], v2, {SRD_WS}, s59 offen sc1')
        if cb < 15: a.I(f's_add_u32 s59, s59, {86*1024}')
    a.wait_all()
    a.I('s_add_u32 s58, s58, 64')
    a.I('s_cmp_lt_u32 s58, 86')
    a.I('s_cbranch_scc1 L_spare_loop')

def cmul(d, x, y):
    return [f'v_mul_f32 v{d}, v{x}, v{y}', f'v_mul_f32 v{d+1}, v{x}, v{y+1}',
            f'v_fma_f32 v{d}, -v{x+1}, v{y+1}, v{d}', f'v_fma_f32 v{d+1}, v{x+1}, v{y}, v{d+1}']

def ilv(*ls):
    out = []; n = max(len(l) for l in ls)
    for i in range(n):
        for l in ls:
            if i < len(l): out.append(l[i])
    return out

def conv(a):
    KT = 32768; XSO = 16384; EXO = 8704
    a.I(f's_lshl_b32 s58, {sXCD}, 5'); a.I(f's_add_u32 s58, s58, {sIDX}')
    a.I(f's_lshr_b32 s59, {sW}, 1'); a.I('s_lshl_b32 s60, s58, 1'); a.I('s_add_u32 s60, s60, s59')
    a.I(f's_and_b32 s61, {sW}, 1')
    a.I('s_lshl_b32 s62, s60, 8'); a.I('s_lshl_b32 s63, s61, 7'); a.I('s_add_u32 s62, s62, s63')
    a.I(f'v_lshl_add_u32 v2, {vL}, 1, s62')
    a.I('s_lshl_b32 s62, s60, 1'); a.I('v_mov_b32 v3, s62')
    a.I('global_load_ushort v4, v2, s[18:19]'); a.I('global_load_ushort v5, v2, s[20:21]')
    a.I('global_load_ushort v6, v2, s[22:23]'); a.I('global_load_ushort v7, v2, s[24:25]')
    a.I('global_load_ushort v8, v3, s[26:27]'); tp = a.I('global_load_ushort v9, v3, s[28:29]')
    a.I('v_lshrrev_b32 v10, 1, v0'); a.I('v_and_b32 v11, 1, v0')
    a.I('v_lshlrev_b32 v12, 13, v10'); a.I('v_lshl_add_u32 v12, v11, 4, v12')
    a.I('s_lshl_b32 s62, s58, 5'); a.I(f's_add_u32 s62, s62, {XT}'); a.I(f's_add_u32 s63, s62, {128*8192}')
    a.I(f'buffer_load_dwordx4 v[16:19], v12, {SRD_WS}, s62 offen sc1')
    tx = a.I(f'buffer_load_dwordx4 v[20:23], v12, {SRD_WS}, s63 offen sc1')
    a.I(f'v_mul_u32_u24 v13, {2*AREA}, v11'); a.I('v_lshl_add_u32 v13, v10, 4, v13')
    a.I(f's_mul_i32 s64, s59, {2*AREA}')
    a.I(f'v_min_u32 v14, 29, {vL}'); a.I('v_lshl_add_u32 v14, v14, 4, s64')
    for i in range(4): a.I(f'v_mov_b32 v{24+i}, 0')
    a.I(f'ds_write_b128 v14, v[24:27] offset:{XSO}')
    a.wait(tp)
    for r in range(4, 10): a.I(f'v_lshlrev_b32 v{r}, 16, v{r}')
    L2E = math.log2(math.e)
    a.I(f'v_mul_f32 v4, {f32(L2E)}, v4'); a.I(f'v_mul_f32 v8, {f32(L2E)}, v8')
    a.I('v_exp_f32 v4, v4'); a.I('v_exp_f32 v8, v8')
    rbf16(a, 'v4', 'v4'); rbf16(a, 'v8', 'v8')
    a.I('v_mul_f32 v4, v4, v8'); a.I('v_mul_f32 v5, v5, v8')
    a.I(f'v_mul_f32 v4, {f32(-L2E)}, v4')
    a.I(f'v_mul_f32 v5, {f32(1/(2*math.pi))}, v5')
    a.I('v_add_f32 v8, v8, v8')
    a.I('v_mul_f32 v6, v6, v8'); a.I('v_mul_f32 v7, v7, v8')
    E1, E2, E4, E8, E16, E256 = 32, 34, 36, 38, 40, 42
    def direct(d, p, t):
        return [f'v_mul_f32 v{t}, {f32(p)}, v4', f'v_mul_f32 v{t+1}, {f32(p)}, v5', f'v_exp_f32 v{t}, v{t}', f'v_fract_f32 v{t+1}, v{t+1}',
                f'v_cos_f32 v{d}, v{t+1}', f'v_sin_f32 v{d+1}, v{t+1}', f'v_mul_f32 v{d}, v{d}, v{t}', f'v_mul_f32 v{d+1}, v{d+1}, v{t}']
    for x in ilv(direct(E8, 8.0, 44), direct(E16, 16.0, 46), direct(E1, 1.0, 48), direct(E256, 256.0, 50)): a.I(x)
    for x in ilv(direct(E2, 2.0, 44), direct(E4, 4.0, 46)): a.I(x)
    a.I(f'v_lshl_add_u32 v10, {vL}, 2, {sA}')
    a.I(f'v_and_b32 v14, 31, {vL}'); a.I(f'v_lshrrev_b32 v15, 5, {vL}')
    a.I('v_mul_u32_u24 v11, 272, v14'); a.I('v_lshl_add_u32 v11, v15, 4, v11'); a.I(f'v_add_u32 v11, {sA}, v11')
    def put(src, row, tmp, neg=False):
        return [f'v_cvt_pk_bf16_f32 v{tmp}, v{src}, {"-" if neg else ""}v{src+1}', f'ds_write_b32 v10, v{tmp} offset:{row*272}']
    a.I('v_mov_b32 v52, 0x3f80'); a.I('ds_write_b32 v10, v52')
    ch0 = put(E16, 2, 53); ch1 = put(E8, 1, 54)
    c0, c1 = E16, E8
    for j in range(1, 16):
        if j < 15:
            d0 = 56 + 2 * (j & 1); ch0 += cmul(d0, c0, E16) + put(d0, 2 * j + 2, 53); c0 = d0
        d1 = 60 + 2 * (j & 1); ch1 += cmul(d1, c1, E16) + put(d1, 2 * j + 1, 54); c1 = d1
    for x in ilv(ch0, ch1): a.I(x)
    a.wait_all(vm=False)
    VB = 64; UB = 96
    for s in range(8): tv = a.I(f'ds_read_b128 v[{VB+4*s}:{VB+4*s+3}], v11 offset:{32*s}')
    Bq = lambda q: 6 if q == 0 else 128 + 2 * q
    for q in range(1, 8):
        for x in cmul(Bq(q), Bq(q - 1), E256): a.I(x)
    a.wait(tv)
    hi0 = [0,1,2,3,4,5,6,7,8, 512,516,520, 1024,1032, 1280,1288]
    hi1 = [256,256,258,260,260,260,262,264,264, 768,772,776, 1536,1544, 1792,1800]
    rows = {}
    for h, lst in enumerate((hi0, hi1)):
        for idx, p in enumerate(lst): rows.setdefault(p, []).append(8 * (idx >> 2) + 4 * h + (idx & 3))
    def putU(src, p, tmp):
        L = [f'v_cvt_pk_bf16_f32 v{tmp}, v{src}, -v{src+1}']
        for r in rows[p]: L.append(f'ds_write_b32 v10, v{tmp} offset:{r*272}')
        return L
    def chainU(q, E, step, n, t0, tmp):
        L = putU(Bq(q), 256 * q, tmp); c = Bq(q)
        for i in range(1, n + 1):
            d = t0 + 2 * (i & 1); L += cmul(d, c, E) + putU(d, 256 * q + step * i, tmp); c = d
        return L
    sA_ = chainU(0, E1, 1, 8, 56, 53) + chainU(4, E8, 8, 1, 56, 53) + chainU(5, E8, 8, 1, 56, 53)
    sB_ = chainU(1, E2, 2, 4, 60, 54) + chainU(2, E4, 4, 2, 60, 54) + chainU(3, E4, 4, 2, 60, 54) + chainU(6, E8, 8, 1, 60, 54) + chainU(7, E8, 8, 1, 60, 54)
    for x in ilv(sA_, sB_): a.I(x)
    a.wait_all(vm=False)
    tu = [a.I(f'ds_read_b128 v[{UB+4*s}:{UB+4*s+3}], v11 offset:{32*s}') for s in range(8)]
    a.wait(tx)
    a.I(f'ds_write_b128 v13, v[16:19] offset:{XSO+480}'); a.I(f'ds_write_b128 v13, v[20:23] offset:{XSO+480+2048}')
    KA = 32
    for s in range(8):
        a.wait(tu[s])
        cc = '0' if s == 0 else f'v[{KA}:{KA+15}]'
        a.I(f'v_mfma_f32_32x32x16_bf16 v[{KA}:{KA+15}], v[{UB+4*s}:{UB+4*s+3}], v[{VB+4*s}:{VB+4*s+3}], {cc}')
    a.I(f'v_lshl_add_u32 v16, {vL}, 4, {sA}')
    a.I(f's_xor_b32 s62, {sW}, 1'); a.I(f's_mul_i32 s62, s62, {AREA}')
    a.I(f'v_lshl_add_u32 v17, {vL}, 4, s62')
    a.I('s_cmp_eq_u32 s61, 1')
    a.I('s_cselect_b64 s[66:67], -1, 0')
    a.I('s_mov_b32 s72, 0xaaaaaaaa'); a.I('s_mov_b32 s73, 0xaaaaaaaa')
    a.I('s_or_b64 s[68:69], s[66:67], s[72:73]'); a.I('s_and_b64 s[70:71], s[66:67], s[72:73]')
    a.I('s_and_b64 s[72:73], s[66:67], 1')
    a.I('s_lshl_b32 s62, s61, 6'); a.I(f's_add_u32 s62, s62, {sA}'); a.I(f's_add_u32 s62, s62, {KT}')
    a.I('v_lshl_add_u32 v18, v15, 5, v14'); a.I('v_sub_u32 v18, 191, v18'); a.I('v_lshl_add_u32 v18, v18, 4, s62')
    a.I('v_lshl_add_u32 v19, v15, 6, v14'); a.I('v_sub_u32 v19, 95, v19'); a.I('v_lshl_add_u32 v19, v19, 4, s62')
    a.I(f'v_lshl_add_u32 v20, {vL}, 4, s62')
    for g in range(4): a.I(f'ds_write_b128 v16, v[{KA+4*g}:{KA+4*g+3}] offset:{EXO + 1024*g}')
    a.wait_all(vm=False); a.I('s_barrier')
    for g in range(4): a.I(f'ds_read_b128 v[{48+4*g}:{48+4*g+3}], v17 offset:{EXO + 1024*g}')
    a.wait_all(vm=False)
    for i in range(16): a.I(f'v_add_f32 v{KA+i}, v{KA+i}, v{48+i}')
    k = lambda i: f'v{KA+i}'
    a.I(f'v_cvt_pk_bf16_f32 v24, {k(0)}, 0'); a.I('v_cndmask_b32 v24, 0, v24, s[72:73]')
    for i in range(8): a.I(f'v_cndmask_b32 v{48+i}, {k(i)}, {k(i+1)}, s[66:67]')
    for n in range(4): a.I(f'v_cvt_pk_bf16_f32 v{64+n}, v{48+7-2*n}, v{48+6-2*n}')
    a.I('ds_write_b128 v18, v[64:67] offset:1024')
    a.I(f'v_cndmask_b32 v56, {k(10)}, {k(11)}, s[66:67]'); a.I(f'v_cndmask_b32 v57, {k(9)}, {k(10)}, s[66:67]')
    a.I(f'v_cvt_pk_bf16_f32 v68, {k(11)}, {k(11)}'); a.I(f'v_cvt_pk_bf16_f32 v69, v56, {k(10)}')
    a.I(f'v_cvt_pk_bf16_f32 v70, {k(10)}, v57'); a.I(f'v_cvt_pk_bf16_f32 v71, {k(9)}, {k(9)}')
    a.I('ds_write_b128 v18, v[68:71]')
    for z in range(2):
        ka, kb = k(12 + 2 * z), k(13 + 2 * z); o = 72 + 4 * z
        a.I(f'v_cndmask_b32 v58, {ka}, {kb}, s[68:69]'); a.I(f'v_cndmask_b32 v59, {ka}, {kb}, s[70:71]')
        a.I(f'v_cvt_pk_bf16_f32 v{o}, {kb}, {kb}'); a.I(f'v_cvt_pk_bf16_f32 v{o+1}, {kb}, v58')
        a.I(f'v_cvt_pk_bf16_f32 v{o+2}, v59, {ka}'); a.I(f'v_cvt_pk_bf16_f32 v{o+3}, {ka}, {ka}')
        a.I(f'ds_write_b128 v19, v[{o}:{o+3}] offset:{512 - 512*z}')
    a.I('s_mov_b64 exec, 3')
    a.I('ds_write_b128 v20, v[24:27] offset:4096')
    a.I('s_mov_b64 exec, -1')
    a.I(f'v_and_b32 v16, 15, {vL}'); a.I(f'v_lshrrev_b32 v17, 4, {vL}')
    a.I('s_xor_b32 s62, s61, 1'); a.I('s_lshl_b32 s62, s62, 8'); a.I('s_add_u32 s62, s62, s64')
    a.I('v_lshlrev_b32 v10, 5, v16'); a.I('v_lshl_add_u32 v10, v17, 4, v10'); a.I('v_add_u32 v10, s62, v10')
    a.I('v_and_b32 v18, 1, v16'); a.I('v_xor_b32 v18, 1, v18')
    a.I('v_sub_u32 v12, v18, v16'); a.I('v_add_u32 v12, 15, v12'); a.I('v_lshlrev_b32 v12, 1, v12')
    a.I('v_lshl_add_u32 v12, v17, 4, v12')
    a.I(f'v_mul_u32_u24 v18, {AREA + 64}, v18'); a.I('v_add3_u32 v12, v12, v18, s62'); a.I(f'v_add_u32 v12, {KT}, v12')
    for kk in range(1, 4): a.I(f'v_add_u32 v{12+kk}, {1024*kk}, v12')
    a.wait_all(vm=False); a.I('s_barrier')
    CA = 32; AF = 64; BF = 96
    tA = {}; tB = {}
    def rdA(q, r):
        kk, z = (7 - q) >> 1, (7 - q) & 1; o = (512 * z + 64 * (3 - r)) // 4; d = AF + 4 * q
        a.I(f'ds_read2_b32 v[{d}:{d+1}], v{12+kk} offset0:{o} offset1:{o+1}')
        tA[q] = a.I(f'ds_read2_b32 v[{d+2}:{d+3}], v{12+kk} offset0:{o+2} offset1:{o+3}')
    def rdB(m, r):
        d = BF + 4 * m
        tB[m] = a.I(f'ds_read_b128 v[{d}:{d+3}], v10 offset:{XSO + 64*(3-r) + 512*m}')
    for i in range(8): rdA(7 - i, 0); rdB(i, 0)
    seen = set()
    for r in range(4):
        for q in range(7, -1, -1):
            for m in range(8 - q):
                a.wait(tA[q], tB[m])
                i = q + m; d = CA + 4 * i
                cc = f'v[{d}:{d+3}]' if i in seen else '0'
                seen.add(i)
                a.I(f'v_mfma_f32_16x16x32_bf16 v[{d}:{d+3}], v[{AF+4*q}:{AF+4*q+3}], v[{BF+4*m}:{BF+4*m+3}], {cc}')
                if q == 0 and r < 3: rdB(m, r + 1)
            if r < 3: rdA(q, r + 1)
    a.I('v_lshl_add_u32 v18, v16, 2, v17')
    a.I('v_bfe_u32 v19, v16, 2, 1'); a.I('v_and_b32 v20, 2, v16'); a.I('v_or_b32 v19, v19, v20')
    a.I('v_xor_b32 v18, v18, v19'); a.I(f'v_lshl_add_u32 v18, v18, 4, {sA}')
    a.I(f'v_bfe_u32 v19, {vL}, 3, 1'); a.I(f'v_bfe_u32 v20, {vL}, 2, 1'); a.I('v_lshl_or_b32 v19, v20, 1, v19')
    a.I(f'v_lshlrev_b32 v20, 1, {vL}'); a.I('v_xor_b32 v19, v19, v20')
    a.I('s_lshl_b32 s62, s61, 12'); a.I('s_add_u32 s62, s62, s64')
    a.I('v_lshl_add_u32 v19, v19, 4, s62'); a.I('v_xor_b32 v20, 16, v19')
    a.I('s_lshl_b32 s62, s61, 11'); a.I('s_add_u32 s63, s62, s64')
    a.I(f'v_lshl_add_u32 v21, {vL}, 4, s63')
    a.I(f'v_lshlrev_b32 v22, 4, {vL}')
    a.I('s_lshl_b32 s63, s60, 12'); a.I('s_add_u32 s63, s63, s62'); a.I(f's_add_u32 s63, s63, {AT}')
    for i in range(8): a.I(f'ds_write_b128 v18, v[{CA+4*i}:{CA+4*i+3}] offset:{1024*i}')
    a.wait_all(vm=False); a.I('s_barrier')
    for n in range(2):
        for pw in range(2):
            for z in range(2):
                d = 64 + 16 * n + 8 * pw + 4 * z
                a.I(f'ds_read_b128 v[{d}:{d+3}], v{19+z} offset:{pw*AREA + 2048*n}')
        a.I(f'ds_read_b128 v[{96+4*n}:{99+4*n}], v21 offset:{XSO + 480 + 1024*n}')
    a.wait_all(vm=False)
    for n in range(2):
        y = 64 + 16 * n
        for i in range(8): a.I(f'v_add_f32 v{y+i}, v{y+i}, v{y+8+i}')
        for i in range(4):
            a.I(f'v_lshlrev_b32 v{y+8+2*i}, 16, v{96+4*n+i}'); a.I(f'v_and_b32 v{y+9+2*i}, 0xffff0000, v{96+4*n+i}')
        for i in range(8): a.I(f'v_fmac_f32 v{y+i}, v{y+8+i}, v9')
        for i in range(4): a.I(f'v_cvt_pk_bf16_f32 v{104+4*n+i}, v{y+2*i}, v{y+2*i+1}')
        a.I(f'buffer_store_dwordx4 v[{104+4*n}:{107+4*n}], v22, {SRD_WS}, s63 offen offset:{1024*n} sc1')

def ffn2(a):
    a.I(f's_and_b32 s58, {sIDX}, 3'); a.I(f's_lshl_b32 s59, {sXCD}, 2'); a.I('s_add_u32 s58, s58, s59')
    a.I(f's_lshr_b32 s59, {sIDX}, 2')
    a.I(f's_mul_i32 s60, {sW}, 22'); a.I(f's_cmp_eq_u32 {sW}, 3'); a.I('s_cselect_b32 s61, 1, 0'); a.I('s_sub_u32 s60, s60, s61')
    a.I('s_mul_i32 s62, s58, 172'); a.I('s_add_u32 s62, s62, s60'); a.I('s_lshl_b32 s62, s62, 10'); a.I(f's_add_u32 s62, s62, {HF}')
    a.I('s_mul_i32 s63, s59, 172'); a.I('s_add_u32 s63, s63, s60'); a.I('s_lshl_b32 s63, s63, 10'); a.I(f's_add_u32 s63, s63, {WDP}')
    a.I(f's_cmp_ge_u32 {sW}, 2'); a.I(f's_cselect_b32 s64, {OOB}, 0')
    a.I(f'v_lshlrev_b32 v2, 4, {vL}'); a.I(f'v_add_u32 v3, {86*1024}, v2')
    def hreg(n):
        return f'a[{176+4*n}:{179+4*n}]' if n < 20 else f'v[{160+4*(n-20)}:{163+4*(n-20)}]'
    def wreg(n): return f'a[{4*n}:{4*n+3}]'
    tk = []
    ACC = 64
    def mm(st):
        a.wait(tk[st])
        for cb in range(2):
            for tb in range(2):
                d = ACC + 16 * (cb * 2 + tb)
                cc = '0' if st == 0 else f'v[{d}:{d+15}]'
                a.I(f'v_mfma_f32_32x32x16_bf16 v[{d}:{d+15}], {wreg(2*st+cb)}, {hreg(2*st+tb)}, {cc}')
    for st in range(22):
        if st and st % 4 == 0:
            a.I('s_add_u32 s62, s62, 4096'); a.I('s_add_u32 s63, s63, 4096')
        if st == 21:
            a.I('s_add_u32 s62, s62, s64'); a.I('s_add_u32 s63, s63, s64')
        o = (st % 4) * 1024
        for z in range(2): a.I(f'buffer_load_dwordx4 {wreg(2*st+z)}, v{2+z}, {SRD_WS}, s63 offen offset:{o} sc1')
        for z in range(2): t = a.I(f'buffer_load_dwordx4 {hreg(2*st+z)}, v{2+z}, {SRD_WS}, s62 offen offset:{o} sc1')
        tk.append(t)
        if st >= 14: mm(st - 14)
    a.I(f'v_lshrrev_b32 v4, 3, {vL}'); a.I(f'v_and_b32 v5, 7, {vL}')
    a.I('v_lshlrev_b32 v6, 10, v4'); a.I('v_lshl_add_u32 v6, v5, 4, v6')
    a.I('v_lshlrev_b32 v7, 12, v4'); a.I('v_lshl_add_u32 v7, v5, 4, v7')
    a.I('s_lshl_b32 s65, s58, 2'); a.I(f's_add_u32 s65, s65, {sW}'); a.I('s_lshl_b32 s65, s65, 14')
    a.I('s_lshl_b32 s66, s59, 7'); a.I('s_add_u32 s65, s65, s66'); a.I('s_add_u32 s66, s65, 8192')
    a.I('s_lshl_b32 s67, s59, 2'); a.I(f's_add_u32 s67, s67, {sW}'); a.I('s_lshl_b32 s67, s67, 16')
    a.I('s_lshl_b32 s68, s58, 7'); a.I('s_add_u32 s67, s67, s68'); a.I(f's_add_u32 s67, s67, {AT}'); a.I('s_add_u32 s68, s67, 32768')
    for st in range(8, 12): mm(st)
    a.I(f'buffer_load_dwordx4 v[8:11], v6, {SRD_X}, s65 offen'); txr = a.I(f'buffer_load_dwordx4 v[12:15], v6, {SRD_X}, s66 offen')
    a.I(f'buffer_load_dwordx4 v[16:19], v7, {SRD_WS}, s67 offen sc1'); tat = a.I(f'buffer_load_dwordx4 v[20:23], v7, {SRD_WS}, s68 offen sc1')
    for st in range(12, 22): mm(st)
    PW = 17408; ATL = 4 * PW; T2 = ATL + 64 * 144
    a.I(f'v_and_b32 v24, 31, {vL}'); a.I(f'v_lshrrev_b32 v25, 5, {vL}')
    a.I('v_mul_u32_u24 v24, 272, v24'); a.I('v_lshl_add_u32 v24, v25, 4, v24')
    a.I(f's_mul_i32 s69, {sW}, {PW}'); a.I('v_add_u32 v24, s69, v24')
    a.I(f's_mul_i32 s69, {sW}, {16*144}'); a.I('v_mul_u32_u24 v25, 144, v4'); a.I('v_lshl_add_u32 v25, v5, 4, v25'); a.I('v_add_u32 v25, s69, v25')
    a.I(f'v_add_u32 v25, {ATL}, v25')
    a.I(f's_mul_i32 s70, {sW}, {16*272}'); a.I('v_mul_u32_u24 v26, 272, v4'); a.I('v_lshl_add_u32 v26, v5, 5, v26'); a.I('v_add_u32 v26, s70, v26')
    a.I(f'v_lshrrev_b32 v27, 2, {vL}'); a.I('v_mul_u32_u24 v27, 144, v27'); a.I(f'v_and_b32 v28, 3, {vL}'); a.I('v_lshl_add_u32 v27, v28, 3, v27')
    a.I(f's_lshl_b32 s70, {sW}, 5'); a.I(f's_add_u32 s70, s70, {ATL}'); a.I('v_add_u32 v27, s70, v27')
    a.I(f'v_and_b32 v28, 15, {vL}'); a.I('v_mul_u32_u24 v28, 144, v28'); a.I(f'v_lshrrev_b32 v29, 4, {vL}'); a.I('v_lshl_add_u32 v28, v29, 3, v28')
    a.I(f's_add_u32 s69, s69, {T2}'); a.I('v_add_u32 v28, s69, v28')
    for cb in range(2):
        for tb in range(2):
            for g in range(4):
                d = ACC + 16 * (cb * 2 + tb) + 4 * g
                a.I(f'ds_write_b128 v24, v[{d}:{d+3}] offset:{tb*8704 + cb*128 + g*32}')
    a.wait(tat)
    a.I('ds_write_b128 v25, v[16:19]'); a.I(f'ds_write_b128 v25, v[20:23] offset:{8*144}')
    a.wait_all(vm=False); a.I('s_barrier')
    for n in range(4): a.I(f'ds_read_b64_tr_b16 v[{16+2*n}:{17+2*n}], v27 offset:{n*16*144}')
    for n in range(2):
        for v in range(4):
            for z in range(2):
                d = 64 + 32 * n + 8 * v + 4 * z
                a.I(f'ds_read_b128 v[{d}:{d+3}], v26 offset:{v*PW + n*8*272 + z*16}')
    a.wait_all(vm=False)
    for n in range(4): a.I(f'ds_write_b64 v28, v[{16+2*n}:{17+2*n}] offset:{n*32}')
    for n in range(2):
        y = 64 + 32 * n
        for i in range(8): a.I(f'v_add_f32 v{y+i}, v{y+i}, v{y+8+i}')
        for i in range(8): a.I(f'v_add_f32 v{y+16+i}, v{y+16+i}, v{y+24+i}')
        for i in range(8): a.I(f'v_add_f32 v{y+i}, v{y+i}, v{y+16+i}')
    a.wait_all(vm=False)
    for n in range(2): a.I(f'ds_read_b128 v[{16+4*n}:{19+4*n}], v25 offset:{T2 - ATL + n*8*144}')
    for n in range(2):
        y = 64 + 32 * n
        for i in range(4):
            a.I(f'v_lshlrev_b32 v{y+8+2*i}, 16, v{8+4*n+i}'); a.I(f'v_and_b32 v{y+9+2*i}, 0xffff0000, v{8+4*n+i}')
        for i in range(8): a.I(f'v_add_f32 v{y+i}, v{y+i}, v{y+8+i}')
    a.wait_all(vm=False)
    for n in range(2):
        y = 64 + 32 * n
        for i in range(4):
            a.I(f'v_lshlrev_b32 v{y+8+2*i}, 16, v{16+4*n+i}'); a.I(f'v_and_b32 v{y+9+2*i}, 0xffff0000, v{16+4*n+i}')
        for i in range(8): a.I(f'v_add_f32 v{y+i}, v{y+i}, v{y+8+i}')
        for i in range(4): a.I(f'v_cvt_pk_bf16_f32 v{y+16+i}, v{y+2*i}, v{y+2*i+1}')
        a.I(f'buffer_store_dwordx4 v[{y+16}:{y+19}], v6, {SRD_OUT}, s{65+n} offen')

def kernel(name, body):
    a = Asm()
    end = f'L_end_{name}'
    prologue(a, end)
    body(a, end)
    a.label(end)
    a.I('s_endpgm')
    txt = a.finish()
    hdr = f'.p2align 8\n.globl {name}\n.type {name},@function\n{name}:\n'
    kd = f'''.amdhsa_kernel {name}
  .amdhsa_next_free_vgpr 512
  .amdhsa_next_free_sgpr 96
  .amdhsa_accum_offset 256
  .amdhsa_group_segment_fixed_size 0
  .amdhsa_kernarg_size 112
  .amdhsa_user_sgpr_count 2
  .amdhsa_user_sgpr_kernarg_segment_ptr 1
  .amdhsa_system_sgpr_workgroup_id_x 1
.end_amdhsa_kernel
'''
    return hdr + txt, kd

def main(out):
    ks = [kernel('front_kernel', front), kernel('conv_kernel', lambda a, e: conv(a)), kernel('ffn2_kernel', lambda a, e: ffn2(a))]
    s = '; generated by gen/gen1.py\n'
    for n in ('front_kernel', 'conv_kernel', 'ffn2_kernel'):
        s += f'; @launch kernel={n} grid=(256,1,1) block=(256,1,1) lds=163840\n'
    s += '.amdgcn_target "amdgcn-amd-amdhsa--gfx950"\n.text\n'
    for c, _ in ks: s += c
    s += '.section .rodata,"a"\n'
    for _, kd in ks: s += '.p2align 6\n' + kd
    open(out, 'w').write(s)

if __name__ == '__main__':
    main(sys.argv[1] if len(sys.argv) > 1 else f'cdna_kernels/{NAME}.s')
```

```python
import sys, math, struct
from asmlib import Asm

NAME = 'parallel_sum__ssm_conv_s4d__geglu_ffn__prompt'
XT  = 1 << 20
HF  = 4 << 20
WDP = 12 << 20
AT  = 16 << 20
WSN = 32 << 20
OOB = 0x40000000
AREA = 40960

def f32(x): return '0x%08x' % struct.unpack('<I', struct.pack('<f', x))[0]

sW, sXCD, sIDX, sTT, sFT = 's3', 's4', 's5', 's6', 's7'
SRD_X, SRD_W, SRD_WS, SRD_WD, SRD_OUT = 's[8:11]', 's[12:15]', 's[44:47]', 's[48:51]', 's[52:55]'
sA = 's56'
vL = 'v1'

STAMPS = False
PREF = False
EXTRA = 0
def stamp(a, i):
    if STAMPS:
        a.I(f's_memrealtime s[{76+2*(i%10)}:{77+2*(i%10)}]'); a.stamps.append(i)
def flush_stamps(a):
    if not STAMPS: return
    a.I('s_waitcnt vmcnt(0) lgkmcnt(0)')
    i = max(a.stamps) + 1
    a.I(f's_memrealtime s[{76+2*(i%10)}:{77+2*(i%10)}]'); a.stamps.append(i)
    a.I('s_waitcnt lgkmcnt(0)')
    a.I('s_lshl_b32 s57, s2, 2'); a.I(f's_add_u32 s57, s57, {sW}'); a.I('s_lshl_b32 s57, s57, 7'); a.I(f's_add_u32 s57, s57, {24<<20}')
    a.I('v_mov_b32 v2, 0'); a.I('s_mov_b64 exec, 1')
    for i in sorted(set(a.stamps)):
        a.I(f'v_mov_b32 v4, s{76+2*(i%10)}'); a.I(f'v_mov_b32 v5, s{77+2*(i%10)}')
        a.I(f'buffer_store_dwordx2 v[4:5], v2, {SRD_WS}, s57 offen offset:{8*i}')
        a.I('s_nop 1')
def prologue(a, end):
    a.I('s_cmp_ge_u32 s2, 256')
    a.I(f's_cbranch_scc1 {end}')
    stamp(a, a.stamp0)
    if PREF and a.stamp0 == 0:
        a.I('s_getpc_b64 s[58:59]')
        a.I('v_lshlrev_b32 v3, 7, v0')
        a.I('global_load_dword v255, v3, s[58:59]')
    a.I('s_load_dwordx16 s[16:31], s[0:1], 0')
    a.I('s_load_dwordx8 s[32:39], s[0:1], 64')
    a.I('s_load_dwordx4 s[40:43], s[0:1], 96')
    a.I('v_lshrrev_b32 v2, 6, v0')
    a.I(f'v_and_b32 {vL}, 63, v0')
    a.I(f'v_readfirstlane_b32 {sW}, v2')
    a.I(f's_and_b32 {sXCD}, s2, 7')
    a.I(f's_lshr_b32 {sIDX}, s2, 3')
    a.I(f's_and_b32 {sTT}, {sIDX}, 1')
    a.I(f's_lshl_b32 s57, {sXCD}, 1')
    a.I(f's_add_u32 {sTT}, {sTT}, s57')
    a.I(f's_lshr_b32 {sFT}, {sIDX}, 1')
    a.I(f's_mul_i32 {sA}, {sW}, {AREA}')
    a.I('s_waitcnt lgkmcnt(0)')
    def srd(b, lo, hi, n):
        a.I(f's_mov_b32 s{b}, s{lo}'); a.I(f's_mov_b32 s{b+1}, s{hi}')
        a.I(f's_mov_b32 s{b+2}, {n}'); a.I(f's_mov_b32 s{b+3}, 0x20000')
    srd(8, 16, 17, 2048 * 1024)
    a.I(f's_bitcmp1_b32 {sW}, 0')
    a.I('s_cselect_b32 s12, s34, s32'); a.I('s_cselect_b32 s13, s35, s33')
    a.I(f's_mov_b32 s14, {512 * 2752}'); a.I('s_mov_b32 s15, 0x20000')
    srd(44, 42, 43, WSN)
    srd(48, 36, 37, 1376 * 1024)
    srd(52, 38, 39, 2048 * 1024)

def rbf16(a, d, s):
    a.I(f'v_cvt_pk_bf16_f32 {d}, {s}, {s}')
    a.I(f'v_lshlrev_b32 {d}, 16, {d}')

def front(a, end):
    XF = 128
    ACC = 32
    WF = 208
    a.I(f's_cmp_eq_u32 {sFT}, 15')
    a.I('s_cbranch_scc1 L_spare')
    stamp(a, 1)
    a.I(f'v_lshrrev_b32 v6, 4, {vL}')
    a.I(f'v_and_b32 v7, 7, {vL}')
    a.I('v_xor_b32 v7, v7, v6')
    a.I(f's_and_b32 s57, {sFT}, 1'); a.I('s_lshl_b32 s57, s57, 2')
    a.I('v_xor_b32 v7, s57, v7')
    a.I('v_lshlrev_b32 v7, 4, v7')
    a.I(f'v_lshrrev_b32 v6, 3, {vL}')
    a.I('v_lshl_add_u32 v2, v6, 10, v7')
    a.I('v_xor_b32 v3, 64, v2')
    a.I('v_add_u32 v4, 14336, v2')
    a.I('v_add_u32 v5, 21504, v3')
    a.I('v_add_u32 v3, 7168, v3')
    a.I(f's_lshl_b32 s58, {sTT}, 2'); a.I(f's_add_u32 s58, s58, {sW}'); a.I('s_lshl_b32 s60, s58, 15')
    a.I(f's_lshr_b32 s59, {sFT}, 1'); a.I('s_lshl_b32 s59, s59, 7')
    a.I('s_or_b32 s60, s60, s59')
    xt = []
    for p in range(8):
        a.I(f's_add_u32 m0, {sA}, {8192 + 4096 * p}')
        a.I(f's_xor_b32 s61, s60, {p << 7}')
        for q in range(4):
            t = a.I(f'buffer_load_dwordx4 v{2+q}, {SRD_X}, s61 offen offset:{q*1024} lds')
        xt.append(t)
    for i in range(3):
        a.I(f'v_add_u32 v6, {64*i}, {vL}')
        a.I('v_mul_u32_u24 v6, 43691, v6')
        a.I('v_lshrrev_b32 v6, 19, v6')
        a.I('v_mul_u32_u24 v6, 2560, v6')
        a.I(f'v_lshl_add_u32 v{10+i}, {vL}, 4, v6')
    a.I(f's_mul_i32 s62, {sFT}, 192'); a.I('s_min_u32 s62, s62, 2560')
    a.I(f's_lshr_b32 s63, {sW}, 1'); a.I('s_mul_i32 s63, s63, 44032'); a.I('s_add_u32 s63, s63, s62')
    wt = {}
    def wdma(c):
        slot = c % 12
        a.I(f's_xor_b32 s61, {sFT}, {c}')
        a.I(f's_add_u32 m0, {sA}, {2048 + 3072 * slot}')
        a.I('s_mul_i32 s61, s61, 88064')
        a.I('s_add_u32 s61, s61, s63')
        for i in range(3):
            wt[c] = a.I(f'buffer_load_dwordx4 v{10+i}, {SRD_W}, s61 offen offset:{i*1024} lds')
    wdma(0); wdma(1)
    a.I(f'v_and_b32 v17, 31, {vL}')
    a.I(f'v_lshrrev_b32 v18, 5, {vL}')
    a.I('v_bfe_u32 v6, v17, 1, 3')
    a.I('v_xor_b32 v6, v6, v18')
    a.I('v_lshlrev_b32 v6, 4, v6')
    a.I('v_lshl_add_u32 v6, v17, 7, v6')
    a.I(f's_add_u32 s61, {sA}, 8192')
    a.I('v_add_u32 v6, s61, v6')
    for j in range(1, 4): a.I(f'v_xor_b32 v{6+j}, {j << 5}, v6')
    a.I(f'v_bfe_u32 v19, {vL}, 2, 2')
    a.I('v_lshl_add_u32 v19, v18, 3, v19')
    a.I('v_mul_u32_u24 v13, 192, v19')
    a.I(f'v_bfe_u32 v19, {vL}, 4, 1')
    a.I('v_lshl_add_u32 v13, v19, 5, v13')
    a.I(f'v_and_b32 v20, 3, {vL}')
    a.I('v_lshl_add_u32 v13, v20, 3, v13')
    a.I('v_add_u32 v13, 2048, v13')
    for k in range(1, 4): a.I(f'v_add_u32 v{13+k}, {k * AREA}, v13')
    a.I('v_lshlrev_b32 v21, 6, v17'); a.I('v_lshl_add_u32 v21, v18, 4, v21'); a.I(f'v_add_u32 v21, {sA}, v21')
    a.I(f'v_bfe_u32 v22, {vL}, 2, 2'); a.I('v_lshl_add_u32 v22, v18, 3, v22'); a.I('v_lshlrev_b32 v22, 6, v22')
    a.I('v_lshl_add_u32 v22, v19, 5, v22'); a.I('v_lshl_add_u32 v22, v20, 3, v22'); a.I(f'v_add_u32 v22, {sA}, v22')
    a.I('v_lshlrev_b32 v23, 13, v18'); a.I('v_lshl_add_u32 v23, v17, 4, v23')
    a.I('s_lshl_b32 s64, s58, 15'); a.I(f's_lshl_b32 s65, {sFT}, 9'); a.I('s_add_u32 s64, s64, s65'); a.I(f's_add_u32 s64, s64, {XT}')
    a.I('s_add_u32 s65, s64, 512')
    a.I(f's_cmp_eq_u32 {sFT}, 14')
    a.I(f's_cselect_b32 s65, s65, {OOB}')
    a.I('s_mul_i32 s66, s58, 86'); a.I('s_lshr_b32 s67, s62, 5'); a.I('s_add_u32 s66, s66, s67'); a.I('s_lshl_b32 s66, s66, 10')
    a.I(f's_add_u32 s66, s66, {HF}'); a.I('s_add_u32 s67, s66, 4096')
    a.I(f's_cmp_eq_u32 {sFT}, 14')
    a.I(f's_cselect_b32 s66, {OOB}, s66')
    a.I('v_mov_b32 v24, 0'); a.I('v_mov_b32 v25, 0'); a.I('v_mov_b32 v26, 0x3f803f80')
    freed = {p: [] for p in range(8)}
    for i in range(2, 12): freed[(3072 * (i - 1) - 1) // 4096].append(i)
    for p in range(8):
        a.wait(xt[p])
        for j in range(4):
            s = 4 * p + j
            t = a.I(f'ds_read_b128 v[{XF+4*s}:{XF+4*s+3}], v{6+j} offset:{p*4096}')
        a.wait(t)
        for c in freed[p]: wdma(c)
        for r in range(16):
            x = XF + 16 * p + r
            a.I(f'v_dot2_f32_bf16 v24, v{x}, v26, v24')
            a.I(f'v_dot2_f32_bf16 v25, v{x}, v{x}, v25')
    stamp(a, 2)
    a.I('v_mov_b32 v27, v24'); a.I('v_mov_b32 v28, v25')
    a.I('v_permlane32_swap_b32 v24, v27'); a.I('v_permlane32_swap_b32 v25, v28')
    a.I('v_add_f32 v24, v24, v27'); a.I('v_add_f32 v25, v25, v28')
    a.I(f'v_mul_f32 v24, {f32(1/512)}, v24')
    a.I(f'v_mul_f32 v25, {f32(1/512)}, v25')
    a.I('v_fma_f32 v25, -v24, v24, v25')
    a.I('v_max_f32 v25, 0, v25')
    rbf16(a, 'v24', 'v24'); rbf16(a, 'v25', 'v25')
    a.I(f'v_add_f32 v25, {f32(1e-5)}, v25'); rbf16(a, 'v25', 'v25')
    a.I('v_sqrt_f32 v25, v25'); rbf16(a, 'v25', 'v25')
    a.I('v_rcp_f32 v25, v25')
    a.I('v_mul_f32 v24, v24, v25'); a.I('v_sub_f32 v24, 0, v24')
    def norm(s):
        L = []
        for r in range(4):
            x = XF + 4 * s + r; t0 = 26 + 2 * (r & 1); t1 = t0 + 1
            L += [f'v_lshlrev_b32 v{t0}, 16, v{x}', f'v_and_b32 v{t1}, 0xffff0000, v{x}',
                  f'v_fma_f32 v{t0}, v{t0}, v25, v24', f'v_fma_f32 v{t1}, v{t1}, v25, v24',
                  f'v_cvt_pk_bf16_f32 v{x}, v{t0}, v{t1}']
        return L
    def reads(s):
        L = []
        c = s >> 1; slot = c % 12
        for sub in range(3):
            for mat in range(2):
                d = WF + 24 * (s & 1) + 4 * (sub * 2 + mat)
                for half in range(2):
                    L.append(f'ds_read_b64_tr_b16 a[{d+2*half}:{d+2*half+1}], v{13 + 2*(s&1) + mat} offset:{slot*3072 + half*768 + sub*64}')
        return L
    a.wait(wt[0]); a.I('s_barrier')
    for x in reads(0): a.I(x)
    for x in norm(0): a.I(x)
    XS = 2
    for s in range(32):
        extra = []
        if s in (1, 4):
            k = 0 if s == 1 else 2
            extra += [f'ds_write_b128 v21, v[{XF+4*(k+j)}:{XF+4*(k+j)+3}] offset:{32*j}' for j in range(2)]
        if s in (2, 5):
            extra += [f'ds_read_b64_tr_b16 v[{XS+4*i+2*hf}:{XS+4*i+2*hf+1}], v22 offset:{i*1024 + hf*256}' for i in range(2) for hf in range(2)]
        if s in (3, 6):
            so = 's64' if s == 3 else 's65'
            extra += [f'buffer_store_dwordx4 v[{XS}:{XS+3}], v23, {SRD_WS}, {so} offen sc1',
                      f's_add_u32 {so}, {so}, 16384',
                      f'buffer_store_dwordx4 v[{XS+4}:{XS+7}], v23, {SRD_WS}, {so} offen sc1']
        a.wait_all(vm=False)
        if s & 1 and s < 31:
            c = s >> 1
            a.wait(wt[c + 1]); a.I('s_barrier')
        rd = reads(s + 1) if s < 31 else []
        nm = norm(s + 1) if s < 31 else []
        nv = [2, 2, 2, 2, 6, 6]
        for i in range(6):
            sub, mat = i >> 1, i & 1
            d = ACC + 16 * i; af = WF + 24 * (s & 1) + 4 * i; xf = XF + 4 * s
            cc = '0' if s == 0 else f'v[{d}:{d+15}]'
            a.I(f'v_mfma_f32_32x32x16_bf16 v[{d}:{d+15}], a[{af}:{af+3}], v[{xf}:{xf+3}], {cc}')
            if i == 0:
                for x in extra: a.I(x)
            if i == 1 and s & 1 and (s >> 1) + 12 < 16: wdma((s >> 1) + 12)
            for x in rd[3*i:3*i+3]: a.I(x)
            k0 = sum(nv[:i])
            for x in nm[k0:k0+nv[i]]: a.I(x)
    stamp(a, 3)
    c1 = -2.0 * math.sqrt(2.0 / math.pi) * math.log2(math.e); c2 = c1 * 0.044715
    a.I(f'v_mov_b32 v2, {f32(c1)}'); a.I('v_mov_b32 v3, v2'); a.I(f'v_mov_b32 v4, {f32(c2)}'); a.I('v_mov_b32 v5, v4')
    a.I('v_mov_b32 v6, 1.0'); a.I('v_mov_b32 v7, 1.0'); a.I(f'v_lshlrev_b32 v8, 4, {vL}')
    T = 128
    for sub in range(3):
        for ks in range(2):
            G = ACC + 32 * sub + 8 * ks; U = G + 16; t = T + 16 * (sub * 2 + ks); o = t + 8
            P = lambda b, n: f'v[{b+2*n}:{b+2*n+1}]'
            for n in range(4): a.I(f'v_pk_mul_f32 {P(t,n)}, {P(G,n)}, {P(G,n)}')
            for n in range(4): a.I(f'v_pk_fma_f32 {P(t,n)}, {P(t,n)}, v[4:5], v[2:3]')
            for n in range(4): a.I(f'v_pk_mul_f32 {P(t,n)}, {P(t,n)}, {P(G,n)}')
            for n in range(8): a.I(f'v_exp_f32 v{t+n}, v{t+n}')
            for n in range(4): a.I(f'v_pk_mul_f32 {P(G,n)}, {P(G,n)}, {P(U,n)}')
            for n in range(4): a.I(f'v_pk_add_f32 {P(t,n)}, {P(t,n)}, v[6:7]')
            for n in range(8): a.I(f'v_rcp_f32 v{t+n}, v{t+n}')
            for n in range(4): a.I(f'v_pk_mul_f32 {P(G,n)}, {P(G,n)}, {P(t,n)}')
            for n in range(4): a.I(f'v_cvt_pk_bf16_f32 v{o+n}, v{G+2*n}, v{G+2*n+1}')
            so, off = ('s66', (2 * sub + ks) * 1024) if sub < 2 else ('s67', ks * 1024)
            a.I(f'buffer_store_dwordx4 v[{o}:{o+3}], v8, {SRD_WS}, {so} offen offset:{off} sc1')
    stamp(a, 4)
    a.I(f's_branch {end}')
    a.label('L_spare')
    stamp(a, 1); stamp(a, 2); stamp(a, 3); stamp(a, 4)
    a.I(f's_lshl_b32 s58, {sTT}, 2'); a.I(f's_add_u32 s58, s58, {sW}')
    a.I(f'v_lshlrev_b32 v2, 4, {vL}')
    a.I(f'v_lshrrev_b32 v3, 5, {vL}'); a.I(f'v_bfe_u32 v4, {vL}, 2, 2'); a.I('v_lshl_add_u32 v3, v3, 2, v4')
    a.I('v_mul_u32_u24 v3, 1088, v3')
    a.I(f'v_bfe_u32 v4, {vL}, 4, 1'); a.I('v_lshl_add_u32 v3, v4, 5, v3')
    a.I(f'v_and_b32 v4, 3, {vL}'); a.I('v_lshl_add_u32 v3, v4, 3, v3'); a.I(f'v_add_u32 v3, {sA}, v3')
    a.label('L_spare_loop')
    a.I('s_lshl_b32 s59, s58, 14')
    a.I(f's_mov_b32 m0, {sA}')
    for i in range(16):
        a.I(f'buffer_load_dwordx4 v2, {SRD_WD}, s59 offen lds')
        if i < 15:
            a.I('s_add_u32 m0, m0, 1088'); a.I('s_add_u32 s59, s59, 1024')
    a.wait_all()
    for cb in range(16):
        for hf in range(2):
            a.I(f'ds_read_b64_tr_b16 v[{32+4*cb+2*hf}:{32+4*cb+2*hf+1}], v3 offset:{hf*8*1088 + cb*64}')
    a.wait_all()
    a.I('s_lshl_b32 s59, s58, 10'); a.I(f's_add_u32 s59, s59, {WDP}')
    for cb in range(16):
        a.I(f'buffer_store_dwordx4 v[{32+4*cb}:{32+4*cb+3}], v2, {SRD_WS}, s59 offen sc1')
        if cb < 15: a.I(f's_add_u32 s59, s59, {86*1024}')
    a.wait_all()
    a.I('s_add_u32 s58, s58, 64')
    a.I('s_cmp_lt_u32 s58, 86')
    a.I('s_cbranch_scc1 L_spare_loop')

def cmul(d, x, y):
    return [f'v_mul_f32 v{d}, v{x}, v{y}', f'v_mul_f32 v{d+1}, v{x}, v{y+1}',
            f'v_fma_f32 v{d}, -v{x+1}, v{y+1}, v{d}', f'v_fma_f32 v{d+1}, v{x+1}, v{y}, v{d+1}']

def ilv(*ls):
    out = []; n = max(len(l) for l in ls)
    for i in range(n):
        for l in ls:
            if i < len(l): out.append(l[i])
    return out

def conv(a):
    KT = 32768; XSO = 16384; EXO = 8704
    a.I(f's_lshl_b32 s58, {sXCD}, 5'); a.I(f's_add_u32 s58, s58, {sIDX}')
    a.I(f's_lshr_b32 s59, {sW}, 1'); a.I('s_lshl_b32 s60, s58, 1'); a.I('s_add_u32 s60, s60, s59')
    a.I(f's_and_b32 s61, {sW}, 1')
    a.I('s_lshl_b32 s62, s60, 8'); a.I('s_lshl_b32 s63, s61, 7'); a.I('s_add_u32 s62, s62, s63')
    a.I(f'v_lshl_add_u32 v2, {vL}, 1, s62')
    a.I('s_lshl_b32 s62, s60, 1'); a.I('v_mov_b32 v3, s62')
    a.I('global_load_ushort v4, v2, s[18:19]'); a.I('global_load_ushort v5, v2, s[20:21]')
    a.I('global_load_ushort v6, v2, s[22:23]'); a.I('global_load_ushort v7, v2, s[24:25]')
    a.I('global_load_ushort v8, v3, s[26:27]'); tp = a.I('global_load_ushort v9, v3, s[28:29]')
    a.I('v_lshrrev_b32 v10, 1, v0'); a.I('v_and_b32 v11, 1, v0')
    a.I('v_lshlrev_b32 v12, 13, v10'); a.I('v_lshl_add_u32 v12, v11, 4, v12')
    a.I('s_lshl_b32 s62, s58, 5'); a.I(f's_add_u32 s62, s62, {XT}'); a.I(f's_add_u32 s63, s62, {128*8192}')
    a.I(f'buffer_load_dwordx4 v[16:19], v12, {SRD_WS}, s62 offen sc1')
    tx = a.I(f'buffer_load_dwordx4 v[20:23], v12, {SRD_WS}, s63 offen sc1')
    a.I(f'v_mul_u32_u24 v13, {2*AREA}, v11'); a.I('v_lshl_add_u32 v13, v10, 4, v13')
    a.I(f's_mul_i32 s64, s59, {2*AREA}')
    a.I(f'v_min_u32 v14, 29, {vL}'); a.I('v_lshl_add_u32 v14, v14, 4, s64')
    for i in range(4): a.I(f'v_mov_b32 v{24+i}, 0')
    a.I(f'ds_write_b128 v14, v[24:27] offset:{XSO}')
    a.wait(tp)
    stamp(a, 7)
    for r in range(4, 10): a.I(f'v_lshlrev_b32 v{r}, 16, v{r}')
    L2E = math.log2(math.e)
    a.I(f'v_mul_f32 v4, {f32(L2E)}, v4'); a.I(f'v_mul_f32 v8, {f32(L2E)}, v8')
    a.I('v_exp_f32 v4, v4'); a.I('v_exp_f32 v8, v8')
    rbf16(a, 'v4', 'v4'); rbf16(a, 'v8', 'v8')
    a.I('v_mul_f32 v4, v4, v8'); a.I('v_mul_f32 v5, v5, v8')
    a.I(f'v_mul_f32 v4, {f32(-L2E)}, v4')
    a.I(f'v_mul_f32 v5, {f32(1/(2*math.pi))}, v5')
    a.I('v_add_f32 v8, v8, v8')
    a.I('v_mul_f32 v6, v6, v8'); a.I('v_mul_f32 v7, v7, v8')
    E1, E2, E4, E8, E16, E256 = 32, 34, 36, 38, 40, 42
    def direct(d, p, t):
        return [f'v_mul_f32 v{t}, {f32(p)}, v4', f'v_mul_f32 v{t+1}, {f32(p)}, v5', f'v_exp_f32 v{t}, v{t}', f'v_fract_f32 v{t+1}, v{t+1}',
                f'v_cos_f32 v{d}, v{t+1}', f'v_sin_f32 v{d+1}, v{t+1}', f'v_mul_f32 v{d}, v{d}, v{t}', f'v_mul_f32 v{d+1}, v{d+1}, v{t}']
    for x in ilv(direct(E8, 8.0, 44), direct(E16, 16.0, 46), direct(E1, 1.0, 48), direct(E256, 256.0, 50)): a.I(x)
    for x in ilv(direct(E2, 2.0, 44), direct(E4, 4.0, 46)): a.I(x)
    a.I(f'v_lshl_add_u32 v10, {vL}, 2, {sA}')
    a.I(f'v_and_b32 v14, 31, {vL}'); a.I(f'v_lshrrev_b32 v15, 5, {vL}')
    a.I('v_mul_u32_u24 v11, 272, v14'); a.I('v_lshl_add_u32 v11, v15, 4, v11'); a.I(f'v_add_u32 v11, {sA}, v11')
    def put(src, row, tmp, neg=False):
        return [f'v_cvt_pk_bf16_f32 v{tmp}, v{src}, {"-" if neg else ""}v{src+1}', f'ds_write_b32 v10, v{tmp} offset:{row*272}']
    a.I('v_mov_b32 v52, 0x3f80'); a.I('ds_write_b32 v10, v52')
    ch0 = put(E16, 2, 53); ch1 = put(E8, 1, 54)
    c0, c1 = E16, E8
    for j in range(1, 16):
        if j < 15:
            d0 = 56 + 2 * (j & 1); ch0 += cmul(d0, c0, E16) + put(d0, 2 * j + 2, 53); c0 = d0
        d1 = 60 + 2 * (j & 1); ch1 += cmul(d1, c1, E16) + put(d1, 2 * j + 1, 54); c1 = d1
    for x in ilv(ch0, ch1): a.I(x)
    a.wait_all(vm=False)
    VB = 64; UB = 96
    for s in range(8): tv = a.I(f'ds_read_b128 v[{VB+4*s}:{VB+4*s+3}], v11 offset:{32*s}')
    Bq = lambda q: 6 if q == 0 else 128 + 2 * q
    for q in range(1, 8):
        for x in cmul(Bq(q), Bq(q - 1), E256): a.I(x)
    a.wait(tv)
    hi0 = [0,1,2,3,4,5,6,7,8, 512,516,520, 1024,1032, 1280,1288]
    hi1 = [256,256,258,260,260,260,262,264,264, 768,772,776, 1536,1544, 1792,1800]
    rows = {}
    for h, lst in enumerate((hi0, hi1)):
        for idx, p in enumerate(lst): rows.setdefault(p, []).append(8 * (idx >> 2) + 4 * h + (idx & 3))
    def putU(src, p, tmp):
        L = [f'v_cvt_pk_bf16_f32 v{tmp}, v{src}, -v{src+1}']
        for r in rows[p]: L.append(f'ds_write_b32 v10, v{tmp} offset:{r*272}')
        return L
    def chainU(q, E, step, n, t0, tmp):
        L = putU(Bq(q), 256 * q, tmp); c = Bq(q)
        for i in range(1, n + 1):
            d = t0 + 2 * (i & 1); L += cmul(d, c, E) + putU(d, 256 * q + step * i, tmp); c = d
        return L
    sA_ = chainU(0, E1, 1, 8, 56, 53) + chainU(4, E8, 8, 1, 56, 53) + chainU(5, E8, 8, 1, 56, 53)
    sB_ = chainU(1, E2, 2, 4, 60, 54) + chainU(2, E4, 4, 2, 60, 54) + chainU(3, E4, 4, 2, 60, 54) + chainU(6, E8, 8, 1, 60, 54) + chainU(7, E8, 8, 1, 60, 54)
    for x in ilv(sA_, sB_): a.I(x)
    a.wait_all(vm=False)
    tu = [a.I(f'ds_read_b128 v[{UB+4*s}:{UB+4*s+3}], v11 offset:{32*s}') for s in range(8)]
    a.wait(tx)
    a.I(f'ds_write_b128 v13, v[16:19] offset:{XSO+480}'); a.I(f'ds_write_b128 v13, v[20:23] offset:{XSO+480+2048}')
    KA = 32
    for s in range(8):
        a.wait(tu[s])
        cc = '0' if s == 0 else f'v[{KA}:{KA+15}]'
        a.I(f'v_mfma_f32_32x32x16_bf16 v[{KA}:{KA+15}], v[{UB+4*s}:{UB+4*s+3}], v[{VB+4*s}:{VB+4*s+3}], {cc}')
    a.I(f'v_lshl_add_u32 v16, {vL}, 4, {sA}')
    a.I(f's_xor_b32 s62, {sW}, 1'); a.I(f's_mul_i32 s62, s62, {AREA}')
    a.I(f'v_lshl_add_u32 v17, {vL}, 4, s62')
    a.I('s_cmp_eq_u32 s61, 1')
    a.I('s_cselect_b64 s[66:67], -1, 0')
    a.I('s_mov_b32 s72, 0xaaaaaaaa'); a.I('s_mov_b32 s73, 0xaaaaaaaa')
    a.I('s_or_b64 s[68:69], s[66:67], s[72:73]'); a.I('s_and_b64 s[70:71], s[66:67], s[72:73]')
    a.I('s_and_b64 s[72:73], s[66:67], 1')
    a.I('s_lshl_b32 s62, s61, 6'); a.I(f's_add_u32 s62, s62, {sA}'); a.I(f's_add_u32 s62, s62, {KT}')
    a.I('v_lshl_add_u32 v18, v15, 5, v14'); a.I('v_sub_u32 v18, 191, v18'); a.I('v_lshl_add_u32 v18, v18, 4, s62')
    a.I('v_lshl_add_u32 v19, v15, 6, v14'); a.I('v_sub_u32 v19, 95, v19'); a.I('v_lshl_add_u32 v19, v19, 4, s62')
    a.I(f'v_lshl_add_u32 v20, {vL}, 4, s62')
    for g in range(4): a.I(f'ds_write_b128 v16, v[{KA+4*g}:{KA+4*g+3}] offset:{EXO + 1024*g}')
    a.wait_all(vm=False); a.I('s_barrier')
    for g in range(4): a.I(f'ds_read_b128 v[{48+4*g}:{48+4*g+3}], v17 offset:{EXO + 1024*g}')
    a.wait_all(vm=False)
    for i in range(16): a.I(f'v_add_f32 v{KA+i}, v{KA+i}, v{48+i}')
    k = lambda i: f'v{KA+i}'
    a.I(f'v_cvt_pk_bf16_f32 v24, {k(0)}, 0'); a.I('v_cndmask_b32 v24, 0, v24, s[72:73]')
    for i in range(8): a.I(f'v_cndmask_b32 v{48+i}, {k(i)}, {k(i+1)}, s[66:67]')
    for n in range(4): a.I(f'v_cvt_pk_bf16_f32 v{64+n}, v{48+7-2*n}, v{48+6-2*n}')
    a.I('ds_write_b128 v18, v[64:67] offset:1024')
    a.I(f'v_cndmask_b32 v56, {k(10)}, {k(11)}, s[66:67]'); a.I(f'v_cndmask_b32 v57, {k(9)}, {k(10)}, s[66:67]')
    a.I(f'v_cvt_pk_bf16_f32 v68, {k(11)}, {k(11)}'); a.I(f'v_cvt_pk_bf16_f32 v69, v56, {k(10)}')
    a.I(f'v_cvt_pk_bf16_f32 v70, {k(10)}, v57'); a.I(f'v_cvt_pk_bf16_f32 v71, {k(9)}, {k(9)}')
    a.I('ds_write_b128 v18, v[68:71]')
    for z in range(2):
        ka, kb = k(12 + 2 * z), k(13 + 2 * z); o = 72 + 4 * z
        a.I(f'v_cndmask_b32 v58, {ka}, {kb}, s[68:69]'); a.I(f'v_cndmask_b32 v59, {ka}, {kb}, s[70:71]')
        a.I(f'v_cvt_pk_bf16_f32 v{o}, {kb}, {kb}'); a.I(f'v_cvt_pk_bf16_f32 v{o+1}, {kb}, v58')
        a.I(f'v_cvt_pk_bf16_f32 v{o+2}, v59, {ka}'); a.I(f'v_cvt_pk_bf16_f32 v{o+3}, {ka}, {ka}')
        a.I(f'ds_write_b128 v19, v[{o}:{o+3}] offset:{512 - 512*z}')
    a.I('s_mov_b64 exec, 3')
    a.I('ds_write_b128 v20, v[24:27] offset:4096')
    a.I('s_mov_b64 exec, -1')
    a.I(f'v_and_b32 v16, 15, {vL}'); a.I(f'v_lshrrev_b32 v17, 4, {vL}')
    a.I('s_xor_b32 s62, s61, 1'); a.I('s_lshl_b32 s62, s62, 8'); a.I('s_add_u32 s62, s62, s64')
    a.I('v_lshlrev_b32 v10, 5, v16'); a.I('v_lshl_add_u32 v10, v17, 4, v10'); a.I('v_add_u32 v10, s62, v10')
    a.I('v_and_b32 v18, 1, v16'); a.I('v_xor_b32 v18, 1, v18')
    a.I('v_sub_u32 v12, v18, v16'); a.I('v_add_u32 v12, 15, v12'); a.I('v_lshlrev_b32 v12, 1, v12')
    a.I('v_lshl_add_u32 v12, v17, 4, v12')
    a.I(f'v_mul_u32_u24 v18, {AREA + 64}, v18'); a.I('v_add3_u32 v12, v12, v18, s62'); a.I(f'v_add_u32 v12, {KT}, v12')
    for kk in range(1, 4): a.I(f'v_add_u32 v{12+kk}, {1024*kk}, v12')
    a.wait_all(vm=False); a.I('s_barrier')
    stamp(a, 8)
    CA = 32; AF = 64; BF = 96
    tA = {}; tB = {}
    def rdA(q, r):
        kk, z = (7 - q) >> 1, (7 - q) & 1; o = (512 * z + 64 * (3 - r)) // 4; d = AF + 4 * q
        a.I(f'ds_read2_b32 v[{d}:{d+1}], v{12+kk} offset0:{o} offset1:{o+1}')
        tA[q] = a.I(f'ds_read2_b32 v[{d+2}:{d+3}], v{12+kk} offset0:{o+2} offset1:{o+3}')
    def rdB(m, r):
        d = BF + 4 * m
        tB[m] = a.I(f'ds_read_b128 v[{d}:{d+3}], v10 offset:{XSO + 64*(3-r) + 512*m}')
    for i in range(8): rdA(7 - i, 0); rdB(i, 0)
    seen = set()
    for r in range(4):
        for q in range(7, -1, -1):
            for m in range(8 - q):
                a.wait(tA[q], tB[m])
                i = q + m; d = CA + 4 * i
                cc = f'v[{d}:{d+3}]' if i in seen else '0'
                seen.add(i)
                a.I(f'v_mfma_f32_16x16x32_bf16 v[{d}:{d+3}], v[{AF+4*q}:{AF+4*q+3}], v[{BF+4*m}:{BF+4*m+3}], {cc}')
                if q == 0 and r < 3: rdB(m, r + 1)
            if r < 3: rdA(q, r + 1)
    stamp(a, 9)
    a.I('v_lshl_add_u32 v18, v16, 2, v17')
    a.I('v_bfe_u32 v19, v16, 2, 1'); a.I('v_and_b32 v20, 2, v16'); a.I('v_or_b32 v19, v19, v20')
    a.I('v_xor_b32 v18, v18, v19'); a.I(f'v_lshl_add_u32 v18, v18, 4, {sA}')
    a.I(f'v_bfe_u32 v19, {vL}, 3, 1'); a.I(f'v_bfe_u32 v20, {vL}, 2, 1'); a.I('v_lshl_or_b32 v19, v20, 1, v19')
    a.I(f'v_lshlrev_b32 v20, 1, {vL}'); a.I('v_xor_b32 v19, v19, v20')
    a.I('s_lshl_b32 s62, s61, 12'); a.I('s_add_u32 s62, s62, s64')
    a.I('v_lshl_add_u32 v19, v19, 4, s62'); a.I('v_xor_b32 v20, 16, v19')
    a.I('s_lshl_b32 s62, s61, 11'); a.I('s_add_u32 s63, s62, s64')
    a.I(f'v_lshl_add_u32 v21, {vL}, 4, s63')
    a.I(f'v_lshlrev_b32 v22, 4, {vL}')
    a.I('s_lshl_b32 s63, s60, 12'); a.I('s_add_u32 s63, s63, s62'); a.I(f's_add_u32 s63, s63, {AT}')
    for i in range(8): a.I(f'ds_write_b128 v18, v[{CA+4*i}:{CA+4*i+3}] offset:{1024*i}')
    a.wait_all(vm=False); a.I('s_barrier')
    for n in range(2):
        for pw in range(2):
            for z in range(2):
                d = 64 + 16 * n + 8 * pw + 4 * z
                a.I(f'ds_read_b128 v[{d}:{d+3}], v{19+z} offset:{pw*AREA + 2048*n}')
        a.I(f'ds_read_b128 v[{96+4*n}:{99+4*n}], v21 offset:{XSO + 480 + 1024*n}')
    a.wait_all(vm=False)
    for n in range(2):
        y = 64 + 16 * n
        for i in range(8): a.I(f'v_add_f32 v{y+i}, v{y+i}, v{y+8+i}')
        for i in range(4):
            a.I(f'v_lshlrev_b32 v{y+8+2*i}, 16, v{96+4*n+i}'); a.I(f'v_and_b32 v{y+9+2*i}, 0xffff0000, v{96+4*n+i}')
        for i in range(8): a.I(f'v_fmac_f32 v{y+i}, v{y+8+i}, v9')
        for i in range(4): a.I(f'v_cvt_pk_bf16_f32 v{104+4*n+i}, v{y+2*i}, v{y+2*i+1}')
        a.I(f'buffer_store_dwordx4 v[{104+4*n}:{107+4*n}], v22, {SRD_WS}, s63 offen offset:{1024*n} sc1')

def ffn2(a):
    a.I(f's_and_b32 s58, {sIDX}, 3'); a.I(f's_lshl_b32 s59, {sXCD}, 2'); a.I('s_add_u32 s58, s58, s59')
    a.I(f's_lshr_b32 s59, {sIDX}, 2')
    a.I(f's_mul_i32 s60, {sW}, 22'); a.I(f's_cmp_eq_u32 {sW}, 3'); a.I('s_cselect_b32 s61, 1, 0'); a.I('s_sub_u32 s60, s60, s61')
    a.I('s_mul_i32 s62, s58, 172'); a.I('s_add_u32 s62, s62, s60'); a.I('s_lshl_b32 s62, s62, 10'); a.I(f's_add_u32 s62, s62, {HF}')
    a.I('s_mul_i32 s63, s59, 172'); a.I('s_add_u32 s63, s63, s60'); a.I('s_lshl_b32 s63, s63, 10'); a.I(f's_add_u32 s63, s63, {WDP}')
    a.I(f's_cmp_ge_u32 {sW}, 2'); a.I(f's_cselect_b32 s64, {OOB}, 0')
    a.I(f'v_lshlrev_b32 v2, 4, {vL}'); a.I(f'v_add_u32 v3, {86*1024}, v2')
    def hreg(n):
        return f'a[{176+4*n}:{179+4*n}]' if n < 20 else f'v[{160+4*(n-20)}:{163+4*(n-20)}]'
    def wreg(n): return f'a[{4*n}:{4*n+3}]'
    tk = []
    ACC = 64
    def mm(st):
        a.wait(tk[st])
        for cb in range(2):
            for tb in range(2):
                d = ACC + 16 * (cb * 2 + tb)
                cc = '0' if st == 0 else f'v[{d}:{d+15}]'
                a.I(f'v_mfma_f32_32x32x16_bf16 v[{d}:{d+15}], {wreg(2*st+cb)}, {hreg(2*st+tb)}, {cc}')
    for st in range(22):
        if st and st % 4 == 0:
            a.I('s_add_u32 s62, s62, 4096'); a.I('s_add_u32 s63, s63, 4096')
        if st == 21:
            a.I('s_add_u32 s62, s62, s64'); a.I('s_add_u32 s63, s63, s64')
        o = (st % 4) * 1024
        for z in range(2): a.I(f'buffer_load_dwordx4 {wreg(2*st+z)}, v{2+z}, {SRD_WS}, s63 offen offset:{o} sc1')
        for z in range(2): t = a.I(f'buffer_load_dwordx4 {hreg(2*st+z)}, v{2+z}, {SRD_WS}, s62 offen offset:{o} sc1')
        tk.append(t)
        if st >= 14: mm(st - 14)
    stamp(a, 12)
    a.I(f'v_lshrrev_b32 v4, 3, {vL}'); a.I(f'v_and_b32 v5, 7, {vL}')
    a.I('v_lshlrev_b32 v6, 10, v4'); a.I('v_lshl_add_u32 v6, v5, 4, v6')
    a.I('v_lshlrev_b32 v7, 12, v4'); a.I('v_lshl_add_u32 v7, v5, 4, v7')
    a.I('s_lshl_b32 s65, s58, 2'); a.I(f's_add_u32 s65, s65, {sW}'); a.I('s_lshl_b32 s65, s65, 14')
    a.I('s_lshl_b32 s66, s59, 7'); a.I('s_add_u32 s65, s65, s66'); a.I('s_add_u32 s66, s65, 8192')
    a.I('s_lshl_b32 s67, s59, 2'); a.I(f's_add_u32 s67, s67, {sW}'); a.I('s_lshl_b32 s67, s67, 16')
    a.I('s_lshl_b32 s68, s58, 7'); a.I('s_add_u32 s67, s67, s68'); a.I(f's_add_u32 s67, s67, {AT}'); a.I('s_add_u32 s68, s67, 32768')
    for st in range(8, 12): mm(st)
    a.I(f'buffer_load_dwordx4 v[8:11], v6, {SRD_X}, s65 offen'); txr = a.I(f'buffer_load_dwordx4 v[12:15], v6, {SRD_X}, s66 offen')
    a.I(f'buffer_load_dwordx4 v[16:19], v7, {SRD_WS}, s67 offen sc1'); tat = a.I(f'buffer_load_dwordx4 v[20:23], v7, {SRD_WS}, s68 offen sc1')
    for st in range(12, 22): mm(st)
    stamp(a, 13)
    PW = 17408; ATL = 4 * PW; T2 = ATL + 64 * 144
    a.I(f'v_and_b32 v24, 31, {vL}'); a.I(f'v_lshrrev_b32 v25, 5, {vL}')
    a.I('v_mul_u32_u24 v24, 272, v24'); a.I('v_lshl_add_u32 v24, v25, 4, v24')
    a.I(f's_mul_i32 s69, {sW}, {PW}'); a.I('v_add_u32 v24, s69, v24')
    a.I(f's_mul_i32 s69, {sW}, {16*144}'); a.I('v_mul_u32_u24 v25, 144, v4'); a.I('v_lshl_add_u32 v25, v5, 4, v25'); a.I('v_add_u32 v25, s69, v25')
    a.I(f'v_add_u32 v25, {ATL}, v25')
    a.I(f's_mul_i32 s70, {sW}, {16*272}'); a.I('v_mul_u32_u24 v26, 272, v4'); a.I('v_lshl_add_u32 v26, v5, 5, v26'); a.I('v_add_u32 v26, s70, v26')
    a.I(f'v_lshrrev_b32 v27, 2, {vL}'); a.I('v_mul_u32_u24 v27, 144, v27'); a.I(f'v_and_b32 v28, 3, {vL}'); a.I('v_lshl_add_u32 v27, v28, 3, v27')
    a.I(f's_lshl_b32 s70, {sW}, 5'); a.I(f's_add_u32 s70, s70, {ATL}'); a.I('v_add_u32 v27, s70, v27')
    a.I(f'v_and_b32 v28, 15, {vL}'); a.I('v_mul_u32_u24 v28, 144, v28'); a.I(f'v_lshrrev_b32 v29, 4, {vL}'); a.I('v_lshl_add_u32 v28, v29, 3, v28')
    a.I(f's_add_u32 s69, s69, {T2}'); a.I('v_add_u32 v28, s69, v28')
    for cb in range(2):
        for tb in range(2):
            for g in range(4):
                d = ACC + 16 * (cb * 2 + tb) + 4 * g
                a.I(f'ds_write_b128 v24, v[{d}:{d+3}] offset:{tb*8704 + cb*128 + g*32}')
    a.wait(tat)
    a.I('ds_write_b128 v25, v[16:19]'); a.I(f'ds_write_b128 v25, v[20:23] offset:{8*144}')
    a.wait_all(vm=False); a.I('s_barrier')
    for n in range(4): a.I(f'ds_read_b64_tr_b16 v[{16+2*n}:{17+2*n}], v27 offset:{n*16*144}')
    for n in range(2):
        for v in range(4):
            for z in range(2):
                d = 64 + 32 * n + 8 * v + 4 * z
                a.I(f'ds_read_b128 v[{d}:{d+3}], v26 offset:{v*PW + n*8*272 + z*16}')
    a.wait_all(vm=False)
    for n in range(4): a.I(f'ds_write_b64 v28, v[{16+2*n}:{17+2*n}] offset:{n*32}')
    for n in range(2):
        y = 64 + 32 * n
        for i in range(8): a.I(f'v_add_f32 v{y+i}, v{y+i}, v{y+8+i}')
        for i in range(8): a.I(f'v_add_f32 v{y+16+i}, v{y+16+i}, v{y+24+i}')
        for i in range(8): a.I(f'v_add_f32 v{y+i}, v{y+i}, v{y+16+i}')
    a.wait_all(vm=False)
    for n in range(2): a.I(f'ds_read_b128 v[{16+4*n}:{19+4*n}], v25 offset:{T2 - ATL + n*8*144}')
    for n in range(2):
        y = 64 + 32 * n
        for i in range(4):
            a.I(f'v_lshlrev_b32 v{y+8+2*i}, 16, v{8+4*n+i}'); a.I(f'v_and_b32 v{y+9+2*i}, 0xffff0000, v{8+4*n+i}')
        for i in range(8): a.I(f'v_add_f32 v{y+i}, v{y+i}, v{y+8+i}')
    a.wait_all(vm=False)
    for n in range(2):
        y = 64 + 32 * n
        for i in range(4):
            a.I(f'v_lshlrev_b32 v{y+8+2*i}, 16, v{16+4*n+i}'); a.I(f'v_and_b32 v{y+9+2*i}, 0xffff0000, v{16+4*n+i}')
        for i in range(8): a.I(f'v_add_f32 v{y+i}, v{y+i}, v{y+8+i}')
        for i in range(4): a.I(f'v_cvt_pk_bf16_f32 v{y+16+i}, v{y+2*i}, v{y+2*i+1}')
        a.I(f'buffer_store_dwordx4 v[{y+16}:{y+19}], v6, {SRD_OUT}, s{65+n} offen')

def kernel(name, body, st0=0):
    a = Asm(); a.stamps = []; a.stamp0 = st0
    end = f'L_end_{name}'
    prologue(a, end)
    body(a, end + '_s')
    a.label(end + '_s')
    flush_stamps(a)
    a.label(end)
    a.I('s_endpgm')
    txt = a.finish()
    hdr = f'.p2align 8\n.globl {name}\n.type {name},@function\n{name}:\n'
    kd = f'''.amdhsa_kernel {name}
  .amdhsa_next_free_vgpr 512
  .amdhsa_next_free_sgpr 96
  .amdhsa_accum_offset 256
  .amdhsa_group_segment_fixed_size 0
  .amdhsa_kernarg_size 112
  .amdhsa_user_sgpr_count 2
  .amdhsa_user_sgpr_kernarg_segment_ptr 1
  .amdhsa_system_sgpr_workgroup_id_x 1
.end_amdhsa_kernel
'''
    return hdr + txt, kd

def main(out):
    ks = [kernel('front_kernel', front), kernel('conv_kernel', lambda a, e: conv(a), 6), kernel('ffn2_kernel', lambda a, e: ffn2(a), 11)]
    s = '; generated by gen/gen1.py\n'
    for n in ('front_kernel', 'conv_kernel', 'ffn2_kernel'):
        s += f'; @launch kernel={n} grid=(256,1,1) block=(256,1,1) lds=163840\n'
    for i in range(EXTRA): s += '; @launch kernel=nop_kernel grid=(256,1,1) block=(256,1,1) lds=0\n'
    if EXTRA: ks.append(kernel('nop_kernel', lambda a, e: None, 20))
    s += '.amdgcn_target "amdgcn-amd-amdhsa--gfx950"\n.text\n'
    for c, _ in ks: s += c
    s += '.fill 2048, 4, 0xbf800000\n'
    s += '.section .rodata,"a"\n'
    for _, kd in ks: s += '.p2align 6\n' + kd
    open(out, 'w').write(s)

if __name__ == '__main__':
    STAMPS = '--stamps' in sys.argv
    PREF = '--pref' in sys.argv
    EXTRA = int(sys.argv[sys.argv.index('--extra')+1]) if '--extra' in sys.argv else 0
    main(sys.argv[1] if len(sys.argv) > 1 else f'cdna_kernels/{NAME}.s')
```

```python
import sys, math, struct
from asmlib import Asm, TRANS

NAME = 'parallel_sum__ssm_conv_s4d__geglu_ffn__prompt'
FL1, FL2, FL3 = 0x1000, 0x10000, 0x20000
STATS, CSP = 0x30000, 0x40000
XT, HF, WDP, AT = 1 << 20, 4 << 20, 12 << 20, 16 << 20
WSN = 32 << 20
OOB = 0x40000000
AREA, SLOT, M, XSO = 40960, 10240, 30720, 20480
CSQ, CSF, KT, RPS = M + 8704, M + 9472, M + 4352, M + 4096
OPT = {}
def opt(k, d=None): return OPT.get(k, d)
def f32(x): return '0x%08x' % struct.unpack('<I', struct.pack('<f', x))[0]

sW, sXCD, sIDX, sTT, sFT = 's3', 's4', 's5', 's6', 's7'
SRD_X, SRD_W, SRD_WS, SRD_WD, SRD_OUT = 's[8:11]', 's[12:15]', 's[44:47]', 's[48:51]', 's[52:55]'
sA, sCP, TAG, sA1 = 's56', 's57', 's[58:59]', 's60'
vL = 'v1'
vXD, vWD, vXR, vTO, vTS, vFR = 2, 6, 9, 13, 17, 21
ACC, WFR, XFR = 32, 176, 208

def stamp(a, i):
    if 'stamps' not in OPT or 'kst' in OPT: return
    op = 's_memtime' if 'cyc' in OPT else 's_memrealtime'
    a.I(f'{op} s[98:99]'); a.I('s_waitcnt lgkmcnt(0)'); a.lg_done = a.lg_n
    a.I(f'v_writelane_b32 v31, s98, {2*i}'); a.I(f'v_writelane_b32 v31, s99, {2*i+1}')
def flush_stamps(a, i):
    if 'stamps' not in OPT: return
    a.I('s_waitcnt vmcnt(0)'); stamp(a, i)
    a.I('s_lshl_b32 s61, s2, 2'); a.I(f's_add_u32 s61, s61, {sW}'); a.I('s_lshl_b32 s61, s61, 7'); a.I(f's_add_u32 s61, s61, {24<<20}')
    a.I(f'v_lshlrev_b32 v2, 2, {vL}'); a.I('s_mov_b64 exec, 0xffffffff')
    a.I(f'buffer_store_dword v31, v2, {SRD_WS}, s61 offen')

def rbf(d, s): return [f'v_cvt_pk_bf16_f32 {d}, {s}, {s}', f'v_lshlrev_b32 {d}, 16, {d}']
def run(a, items):
    for x in items:
        if isinstance(x, tuple): x = x[1]
        if callable(x): x()
        else: a.I(x)
def wt(x):
    if isinstance(x, tuple): return x[0]
    if callable(x): return 1
    op = x.split()[0]
    if op in TRANS: return 2
    if op.startswith('v_mfma'): return 0
    return 1
def ilv(*ls):
    out = []; n = max(len(l) for l in ls)
    for i in range(n):
        for l in ls:
            if i < len(l): out.append(l[i])
    return out
def flagst(a, soff, sc='sc1'):
    def f():
        a.I('s_mov_b64 exec, 1'); a.I(f'buffer_store_dwordx2 v[28:29], v30, {SRD_WS}, {soff} offen {sc}'); a.I('s_mov_b64 exec, -1')
    return (3, f)
def poll_issue(a, voff, dst, soff):
    return a.I(f'buffer_load_dwordx2 v[{dst}:{dst+1}], {voff}, {SRD_WS}, {soff} offen sc1')
def poll_check(a, tok, voff, dst, soff):
    ok = a.newlabel('L_pok'); lp = a.newlabel('L_plp')
    a.wait(tok)
    a.I(f'v_cmp_ne_u64 vcc, {TAG}, v[{dst}:{dst+1}]')
    a.I(f's_cbranch_vccnz {lp}')
    a.label(ok)
    a.tail += [f'{lp}:', '    s_add_u32 s101, s101, 1', '    s_cmp_gt_u32 s101, 400000', f'    s_cbranch_scc1 {ok}',
               f'    buffer_load_dwordx2 v[{dst}:{dst+1}], {voff}, {SRD_WS}, {soff} offen sc1', '    s_waitcnt vmcnt(0)',
               f'    v_cmp_ne_u64 vcc, {TAG}, v[{dst}:{dst+1}]', f'    s_cbranch_vccnz {lp}', f'    s_branch {ok}']
def wdreg(n, i): return f'a[{16*n+4*i}:{16*n+4*i+3}]'
def hreg(n, i):
    return f'a[{176+16*n+4*i}:{176+16*n+4*i+3}]' if n < 5 else f'v[{160+16*(n-5)+4*i}:{160+16*(n-5)+4*i+3}]'
def frag_loads(a, reg, sreg, toks):
    L = []
    for n in range(11):
        for i in range(4):
            def f(n=n, i=i):
                if i == 0 and n and n % 4 == 0: a.I(f's_add_u32 {sreg}, {sreg}, 4096')
                if i == 0 and n == 10: a.I(f's_add_u32 {sreg}, {sreg}, s72')
                toks[n] = a.I(f'buffer_load_dwordx4 {reg(n,i)}, v{vFR+i}, {SRD_WS}, {sreg} offen offset:{(n%4)*1024} sc1')
            L.append(f)
    return L
def cmul(d, x, y):
    return [f'v_mul_f32 v{d}, v{x}, v{y}', f'v_mul_f32 v{d+1}, v{x}, v{y+1}',
            f'v_fma_f32 v{d}, -v{x+1}, v{y+1}, v{d}', f'v_fmac_f32 v{d+1}, v{x+1}, v{y}']

def kgen(a, tp):
    L2E = math.log2(math.e)
    A = [lambda: a.wait(tp)]
    A += [f'v_lshlrev_b32 v{r}, 16, v{r}' for r in range(250, 255)] + ['v_lshlrev_b32 v139, 16, v255']
    A += [f'v_mul_f32 v250, {f32(L2E)}, v250', f'v_mul_f32 v254, {f32(L2E)}, v254', 'v_exp_f32 v250, v250', 'v_exp_f32 v254, v254']
    A += ['v_cvt_pk_bf16_f32 v250, v250, v254', 'v_and_b32 v254, 0xffff0000, v250', 'v_lshlrev_b32 v250, 16, v250']
    A += ['v_mul_f32 v250, v250, v254', 'v_mul_f32 v251, v251, v254', f'v_mul_f32 v250, {f32(-L2E)}, v250', f'v_mul_f32 v251, {f32(1/(2*math.pi))}, v251',
          'v_add_f32 v254, v254, v254', 'v_mul_f32 v252, v252, v254', 'v_mul_f32 v253, v253, v254']
    E1, E2, E4, E8, E16, E256 = 192, 194, 196, 198, 200, 202
    def direct(d, p, t):
        return [f'v_mul_f32 v{t}, {f32(p)}, v250', f'v_mul_f32 v{t+1}, {f32(p)}, v251', f'v_exp_f32 v{t}, v{t}', f'v_fract_f32 v{t+1}, v{t+1}',
                f'v_cos_f32 v{d}, v{t+1}', f'v_sin_f32 v{d+1}, v{t+1}', f'v_mul_f32 v{d}, v{d}, v{t}', f'v_mul_f32 v{d+1}, v{d+1}, v{t}']
    A += ilv(direct(E8, 8.0, 204), direct(E1, 1.0, 206), direct(E256, 256.0, 208))
    A += ilv(cmul(E16, E8, E8), cmul(E2, E1, E1)) + cmul(E4, E2, E2)
    W, R = 'v232', 'v233'
    def put(src, row, tmp): return [f'v_cvt_pk_bf16_f32 v{tmp}, v{src}, v{src+1}', f'ds_write_b32 {W}, v{tmp} offset:{row*272}']
    A += ['v_mov_b32 v214, 0x3f80', f'ds_write_b32 {W}, v214']
    ch0 = put(E16, 2, 212); ch1 = put(E8, 1, 213); c0, c1 = E16, E8
    for j in range(1, 16):
        if j < 15:
            d0 = 204 + 2 * (j & 1); ch0 += cmul(d0, c0, E16) + put(d0, 2 * j + 2, 212); c0 = d0
        d1 = 208 + 2 * (j & 1); ch1 += cmul(d1, c1, E16) + put(d1, 2 * j + 1, 213); c1 = d1
    A += ilv(ch0, ch1)
    VB, UB, KA = 112, 144, 234
    A += [f'ds_read_b128 a[{VB+4*s}:{VB+4*s+3}], {R} offset:{32*s}' for s in range(8)]
    Bq = lambda q: 252 if q == 0 else 216 + 2 * q
    hi0 = [0,1,2,3,4,5,6,7,8, 512,516,520, 1024,1032, 1280,1288]
    hi1 = [256,256,258,260,260,260,262,264,264, 768,772,776, 1536,1544, 1792,1800]
    rows = {}
    for h, lst in enumerate((hi0, hi1)):
        for idx, p in enumerate(lst): rows.setdefault(p, []).append(8 * (idx >> 2) + 4 * h + (idx & 3))
    def putU(src, p, tmp): return [f'v_cvt_pk_bf16_f32 v{tmp}, v{src}, -v{src+1}'] + [f'ds_write_b32 {W}, v{tmp} offset:{r*272}' for r in rows[p]]
    def chainU(q, E, step, n, t0, tmp):
        L = putU(Bq(q), 256 * q, tmp); c = Bq(q)
        for i in range(1, n + 1):
            d = t0 + 2 * (i & 1); L += cmul(d, c, E) + putU(d, 256 * q + step * i, tmp); c = d
        return L
    bq = []
    for q in range(1, 8): bq += cmul(Bq(q), Bq(q - 1), E256)
    sA_ = chainU(0, E1, 1, 8, 204, 212) + chainU(4, E8, 8, 1, 204, 212) + chainU(5, E8, 8, 1, 204, 212) + chainU(6, E8, 8, 1, 204, 212) + chainU(7, E8, 8, 1, 204, 212)
    sB_ = bq + chainU(1, E2, 2, 4, 208, 213) + chainU(2, E4, 4, 2, 208, 213) + chainU(3, E4, 4, 2, 208, 213)
    A += ilv(sA_, sB_)
    tu = {}
    for s in range(8):
        def f(s=s): tu[s] = a.I(f'ds_read_b128 a[{UB+4*s}:{UB+4*s+3}], {R} offset:{32*s}')
        A.append(f)
    A += [f'v_add_u32 v224, {sA}, v{vFR}', f'v_add_u32 v225, {sA1}, v{vFR}', f'v_and_b32 v204, 31, {vL}', f'v_lshrrev_b32 v205, 5, {vL}',
          'v_lshl_add_u32 v226, v205, 5, v204', 'v_sub_u32 v226, 191, v226', 'v_lshl_add_u32 v226, v226, 4, s34',
          'v_lshl_add_u32 v227, v205, 6, v204', 'v_sub_u32 v227, 95, v227', 'v_lshl_add_u32 v227, v227, 4, s34', f'v_add_u32 v228, s34, v{vFR}']
    A.append(lambda: a.wait(tu[7]))
    for s in range(8):
        cc = '0' if s == 0 else f'v[{KA}:{KA+15}]'
        A.append((2, f'v_mfma_f32_32x32x16_bf16 v[{KA}:{KA+15}], a[{UB+4*s}:{UB+4*s+3}], a[{VB+4*s}:{VB+4*s+3}], {cc}'))
    A += [f'v_mov_b32 v{r}, 0' for r in (220, 221, 222, 223)] + [f'v_min_u32 v204, {29*16}, v{vFR}', 'v_add_u32 v229, s88, v204', (6, 's_nop 0')]
    A += [f'ds_write_b128 v224, v[{KA+4*g}:{KA+4*g+3}] offset:{M + 1024*g}' for g in range(4)]
    B = []; tr = {}
    for g in range(4):
        def f(g=g): tr[0] = a.I(f'ds_read_b128 v[{192+4*g}:{195+4*g}], v225 offset:{M + 1024*g}')
        B.append(f)
    B += [f'ds_write_b128 v229, v[220:223] offset:{XSO}', (4, lambda: a.wait(tr[0]))]
    B += [f'v_add_f32 v{KA+i}, v{KA+i}, v{192+i}' for i in range(16)]
    k = lambda i: f'v{KA+i}'
    B += [f'v_cvt_pk_bf16_f32 v220, {k(0)}, 0', 'v_cndmask_b32 v220, 0, v220, s[96:97]']
    B += [f'v_cndmask_b32 v{192+i}, {k(i)}, {k(i+1)}, s[90:91]' for i in range(8)]
    B += [f'v_cvt_pk_bf16_f32 v{204+n}, v{192+7-2*n}, v{192+6-2*n}' for n in range(4)] + ['ds_write_b128 v226, v[204:207] offset:1024']
    B += [f'v_cndmask_b32 v200, {k(10)}, {k(11)}, s[90:91]', f'v_cndmask_b32 v201, {k(9)}, {k(10)}, s[90:91]',
          f'v_cvt_pk_bf16_f32 v208, {k(11)}, {k(11)}', f'v_cvt_pk_bf16_f32 v209, v200, {k(10)}', f'v_cvt_pk_bf16_f32 v210, {k(10)}, v201', f'v_cvt_pk_bf16_f32 v211, {k(9)}, {k(9)}',
          'ds_write_b128 v226, v[208:211]']
    for z in range(2):
        ka, kb = k(12 + 2 * z), k(13 + 2 * z); o = 212 + 4 * z
        B += [f'v_cndmask_b32 v202, {ka}, {kb}, s[92:93]', f'v_cndmask_b32 v203, {ka}, {kb}, s[94:95]',
              f'v_cvt_pk_bf16_f32 v{o}, {kb}, {kb}', f'v_cvt_pk_bf16_f32 v{o+1}, {kb}, v202', f'v_cvt_pk_bf16_f32 v{o+2}, v203, {ka}', f'v_cvt_pk_bf16_f32 v{o+3}, {ka}, {ka}',
              f'ds_write_b128 v227, v[{o}:{o+3}] offset:{512 - 512*z}']
    def tail():
        a.I('s_mov_b64 exec, 3'); a.I('ds_write_b128 v228, v[220:223] offset:4096'); a.I('s_mov_b64 exec, -1')
    B.append((3, tail))
    return A, B

def gen(a):
    a.tail = []
    END = 'L_end'
    hsc = '' if 'fast' in OPT else 'sc1'
    I = a.I
    I('s_cmp_ge_u32 s2, 256'); I(f's_cbranch_scc1 {END}')
    I('s_load_dwordx16 s[16:31], s[0:1], 0'); I('s_load_dwordx8 s[32:39], s[0:1], 64'); I('s_load_dwordx4 s[40:43], s[0:1], 96')
    I('s_getpc_b64 s[62:63]'); I('v_lshlrev_b32 v2, 7, v0'); I('global_load_dword v249, v2, s[62:63]')
    I('v_lshrrev_b32 v2, 6, v0'); I(f'v_and_b32 {vL}, 63, v0'); I(f'v_readfirstlane_b32 {sW}, v2')
    if 'stamps' in OPT: I('v_mov_b32 v31, 0')
    I(f's_and_b32 {sXCD}, s2, 7'); I(f's_lshr_b32 {sIDX}, s2, 3')
    if 'rowmap' in OPT:
        I(f's_and_b32 {sTT}, {sIDX}, 1'); I(f's_lshl_b32 s61, {sXCD}, 1'); I(f's_add_u32 {sTT}, {sTT}, s61'); I(f's_lshr_b32 {sFT}, {sIDX}, 1')
    else:
        I(f's_and_b32 {sTT}, {sIDX}, 7'); I(f's_lshr_b32 s61, {sXCD}, 2'); I('s_lshl_b32 s61, s61, 3'); I(f's_add_u32 {sTT}, {sTT}, s61')
        I(f's_lshr_b32 {sFT}, {sIDX}, 3'); I(f's_and_b32 s61, {sXCD}, 3'); I('s_lshl_b32 s61, s61, 2'); I(f's_add_u32 {sFT}, {sFT}, s61')
    I(f's_lshl_b32 {sCP}, {sXCD}, 5'); I(f's_add_u32 {sCP}, {sCP}, {sIDX}')
    I(f's_mul_i32 {sA}, {sW}, {AREA}'); I(f's_and_b32 s71, {sW}, 1'); I(f's_lshr_b32 s86, {sW}, 1')
    I(f's_lshl_b32 s69, {sCP}, 2'); I(f's_add_u32 s69, s69, {sW}'); I('s_lshl_b32 s70, s69, 11')
    I(f'v_lshlrev_b32 v{vFR}, 4, {vL}'); I(f'v_lshrrev_b32 v25, 4, {vL}')
    I(f'v_and_b32 v26, 7, {vL}'); I('v_xor_b32 v28, v26, v25')
    I(f's_and_b32 s61, {sTT}, 1'); I('s_lshl_b32 s62, s61, 2'); I('v_xor_b32 v28, s62, v28'); I('v_lshlrev_b32 v28, 4, v28')
    I(f'v_lshrrev_b32 v27, 3, {vL}'); I('v_lshl_add_u32 v2, v27, 10, v28')
    I('v_xor_b32 v3, 64, v2'); I('v_add_u32 v4, 14336, v2'); I('v_add_u32 v5, 21504, v3'); I('v_add_u32 v3, 7168, v3')
    I('v_and_b32 v28, 6, v27'); I('v_xor_b32 v28, v26, v28'); I('v_lshlrev_b32 v28, 4, v28'); I('v_lshl_add_u32 v196, v27, 10, v28')
    for q in range(1, 4): I(f'v_add_u32 v{196+q}, {7168*q}, v196')
    I(f's_cmp_eq_u32 {sFT}, 14'); I('s_cselect_b32 s63, 128, 0')
    for i in range(3):
        I(f'v_add_u32 v28, {64*i}, {vL}'); I('v_mul_u32_u24 v28, 43691, v28'); I('v_lshrrev_b32 v28, 19, v28')
        I('v_mul_u32_u24 v30, 192, v28'); I(f'v_sub_u32 v30, v{vFR}, v30'); I(f'v_add_u32 v30, {1024*i}, v30'); I('v_cmp_gt_u32 vcc, s63, v30')
        I('v_and_b32 v29, 8, v28'); I('v_lshlrev_b32 v29, 2, v29'); I(f'v_xor_b32 v29, v29, v{vFR}')
        I('v_mul_u32_u24 v28, 2560, v28'); I('v_add_u32 v28, v28, v29'); I(f'v_cndmask_b32 v{vWD+i}, v28, 2.0, vcc')
    I(f's_lshl_b32 s87, {sTT}, 2'); I(f's_add_u32 s87, s87, {sW}'); I('s_lshl_b32 s64, s87, 15')
    I(f's_lshr_b32 s65, {sTT}, 1')
    I(f's_mul_i32 s68, {sFT}, 192'); I('s_min_u32 s68, s68, 2560')
    I('s_mul_i32 s66, s86, 44032'); I('s_add_u32 s66, s66, s68')
    I('s_mul_i32 s62, s61, 88064'); I('s_sub_u32 s67, s66, s62'); I('s_add_u32 s67, s67, 88064'); I('s_add_u32 s66, s66, s62')
    I('s_lshl_b32 s61, s2, 1'); I(f's_add_u32 s61, s61, {sW}'); I(f's_cmp_lt_u32 {sW}, 2'); I('s_cselect_b32 s61, s61, 1023')
    I('s_lshr_b32 s62, s61, 3'); I('s_and_b32 s63, s61, 7'); I('s_lshl_b32 s75, s62, 15'); I('s_lshl_b32 s89, s63, 7'); I('s_add_u32 s75, s75, s89')
    I('s_mul_i32 s89, s63, 172'); I('s_add_u32 s89, s89, s62'); I('s_lshl_b32 s89, s89, 10'); I(f's_add_u32 s89, s89, {WDP}')
    I('s_cmp_lt_u32 s61, 344'); I(f's_cselect_b32 s89, s89, {OOB}')
    I('s_lshl_b32 s61, s69, 7'); I(f'v_lshl_add_u32 v248, {vL}, 1, s61'); I('s_and_b32 s61, s69, -2'); I('v_mov_b32 v247, s61')
    I('s_mov_b32 s11, 0x20000'); I('s_mov_b32 s15, 0x20000'); I('s_mov_b32 s47, 0x20000'); I('s_mov_b32 s51, 0x20000'); I('s_mov_b32 s55, 0x20000')
    I(f's_mov_b32 s10, {2048*1024}'); I(f's_mov_b32 s46, {WSN}'); I(f's_mov_b32 s50, {1376*1024}'); I(f's_mov_b32 s54, {2048*1024}')
    I(f's_cmp_eq_u32 {sFT}, 15'); I(f's_cselect_b32 s14, 0, {512 * 2752}'); I(f's_cselect_b32 s64, {OOB}, s64')
    I(f's_add_u32 m0, {sA}, {RPS}')
    I('s_waitcnt lgkmcnt(0)')
    I('s_mov_b32 s8, s16'); I('s_mov_b32 s9, s17')
    I(f'buffer_load_dwordx4 v[160:163], v{vFR}, {SRD_X}, s70 offen')
    trow = I(f'buffer_load_dwordx4 v[164:167], v{vFR}, {SRD_X}, s70 offen offset:1024')
    I('s_load_dwordx2 s[58:59], s[42:43], 0')
    I(f's_bitcmp1_b32 {sW}, 0'); I('s_cselect_b32 s12, s34, s32'); I('s_cselect_b32 s13, s35, s33')
    I('s_mov_b32 s48, s36'); I('s_mov_b32 s49, s37')
    dt = {}
    def dma(sc):
        sl = (sc % 3) * SLOT
        L = [f's_xor_b32 s61, s65, {sc}', f's_add_u32 m0, {sA}, {sl}', 's_lshl_b32 s62, s61, 7', 's_add_u32 s62, s62, s64']
        L += [f'buffer_load_dwordx4 v{vXD+q}, {SRD_X}, s62 offen offset:{q*1024} lds' for q in range(4)]
        L += ['s_mul_i32 s63, s61, 176128', f's_add_u32 m0, {sA}, {sl+4096}', 's_add_u32 s62, s63, s66']
        L += [f'buffer_load_dwordx4 v{vWD+i}, {SRD_W}, s62 offen offset:{i*1024} lds' for i in range(3)]
        L += [f's_add_u32 m0, {sA}, {sl+7168}', 's_add_u32 s62, s63, s67']
        L += [f'buffer_load_dwordx4 v{vWD+i}, {SRD_W}, s62 offen offset:{i*1024} lds' for i in range(2)]
        def last(): dt[sc] = I(f'buffer_load_dwordx4 v{vWD+2}, {SRD_W}, s62 offen offset:2048 lds')
        return L + [last]
    run(a, dma(0))
    I('s_mov_b32 s44, s42'); I('s_mov_b32 s45, s43'); I('s_mov_b32 s52, s38'); I('s_mov_b32 s53, s39')
    stamp(a, 0)
    I(f's_xor_b32 s61, {sW}, 1'); I(f's_mul_i32 {sA1}, s61, {AREA}'); I(f's_mul_i32 s88, s86, {2*AREA}')
    I(f'v_and_b32 v26, 15, {vL}')
    I('v_lshrrev_b32 v28, 1, v26'); I('v_xor_b32 v28, v28, v25'); I('v_lshlrev_b32 v28, 4, v28'); I('v_lshl_add_u32 v28, v26, 7, v28')
    I(f'v_add_u32 v{vXR}, {sA}, v28'); I(f'v_xor_b32 v{vXR+1}, 64, v{vXR}'); I(f'v_add_u32 v{vXR+2}, {sA1}, v28'); I(f'v_xor_b32 v{vXR+3}, 64, v{vXR+2}')
    I(f'v_and_b32 v168, 3, {vL}'); I('v_lshlrev_b32 v168, 3, v168')
    I('v_and_b32 v29, 1, v25'); I(f'v_bfe_u32 v28, {vL}, 2, 2'); I('v_lshl_add_u32 v28, v29, 3, v28'); I('v_mul_u32_u24 v28, 192, v28')
    I('v_lshl_add_u32 v28, v29, 5, v28'); I('v_lshrrev_b32 v29, 1, v25'); I(f'v_mul_u32_u24 v29, {2*AREA}, v29'); I('v_add3_u32 v28, v28, v29, v168')
    I(f'v_add_u32 v{vTS}, {4096+128}, v28'); I(f'v_add_u32 v{vTS+1}, {AREA}, v{vTS}'); I(f'v_xor_b32 v{vTS+2}, 32, v{vTS}'); I(f'v_xor_b32 v{vTS+3}, 32, v{vTS+1}')
    I('s_lshl_b32 s61, s71, 6'); I('s_sub_u32 s61, s61, 128')
    for k in range(4): I(f'v_add_u32 v{vTO+k}, s61, v{vTS+k}')
    I('s_lshl_b32 s61, s86, 5'); I('v_xor_b32 v195, s61, v28'); I(f's_mul_i32 s61, s71, {AREA}'); I('s_add_u32 s61, s61, 4096'); I('v_add_u32 v195, s61, v195')
    for i in range(1, 4): I(f'v_add_u32 v{vFR+i}, {i*43*1024}, v{vFR}')
    I(f's_add_u32 s35, {sA}, {M}')
    I('s_lshl_b32 s61, s71, 7'); I('s_add_u32 s61, s61, s35'); I(f'v_add_u32 v192, s61, v{vFR}')
    I('v_and_b32 v28, 1, v27'); I(f'v_mul_u32_u24 v193, {AREA+128}, v28'); I(f'v_bfe_u32 v28, {vL}, 2, 1'); I('v_mul_u32_u24 v28, 1088, v28')
    I('v_add3_u32 v193, v193, v28, v168'); I('v_lshl_add_u32 v193, v25, 5, v193')
    I(f's_lshl_b32 s61, {sW}, 8'); I(f's_add_u32 s61, s61, {M}'); I('v_add_u32 v193, s61, v193'); I(f'v_add_u32 v194, {2*AREA}, v193')
    I('v_mov_b32 v188, 0x3f803f80')
    for i in range(1, 4): I(f'v_mov_b32 v{188+i}, v188')
    I(f'v_lshrrev_b32 v169, 2, {vL}'); I('v_and_b32 v28, 6, v169'); I('v_lshlrev_b32 v28, 4, v28'); I('v_lshl_add_u32 v200, v169, 7, v28')
    I(f'v_add3_u32 v200, v200, v168, {sA}')
    for ci in range(1, 4): I(f'v_xor_b32 v{200+ci}, {32*ci}, v200')
    I(f'v_lshl_add_u32 v232, {vL}, 2, s35'); I(f'v_and_b32 v28, 31, {vL}'); I(f'v_lshrrev_b32 v29, 5, {vL}')
    I('v_mul_u32_u24 v233, 272, v28'); I('v_lshl_add_u32 v233, v29, 4, v233'); I('v_add_u32 v233, s35, v233')
    I('v_lshlrev_b32 v170, 3, v29')
    I('s_lshl_b32 s34, s71, 6'); I(f's_add_u32 s34, s34, {sA}'); I(f's_add_u32 s34, s34, {KT}')
    I('s_cmp_eq_u32 s71, 1'); I('s_cselect_b64 s[90:91], -1, 0'); I('s_mov_b32 s96, 0xaaaaaaaa'); I('s_mov_b32 s97, 0xaaaaaaaa')
    I('s_or_b64 s[92:93], s[90:91], s[96:97]'); I('s_and_b64 s[94:95], s[90:91], s[96:97]'); I('s_and_b64 s[96:97], s[90:91], 1')
    I('s_xor_b32 s62, s71, 1'); I('s_lshl_b32 s62, s62, 8'); I('s_add_u32 s62, s62, s88')
    I('v_lshlrev_b32 v128, 5, v26'); I('v_lshl_add_u32 v128, v25, 4, v128'); I('v_add_u32 v128, s62, v128')
    I('v_and_b32 v28, 1, v26'); I('v_xor_b32 v28, 1, v28'); I('v_sub_u32 v129, v28, v26'); I('v_add_u32 v129, 15, v129'); I('v_lshlrev_b32 v129, 1, v129')
    I('v_lshl_add_u32 v129, v25, 4, v129'); I(f'v_mul_u32_u24 v28, {AREA + 64}, v28'); I('v_add3_u32 v129, v129, v28, s62'); I(f'v_add_u32 v129, {KT}, v129')
    for kk in range(1, 4): I(f'v_add_u32 v{129+kk}, {1024*kk}, v129')
    I('v_lshl_add_u32 v133, v26, 2, v25'); I('v_bfe_u32 v28, v26, 2, 1'); I('v_and_b32 v29, 2, v26'); I('v_or_b32 v28, v28, v29'); I('v_xor_b32 v133, v133, v28')
    I(f'v_lshl_add_u32 v133, v133, 4, {sA}')
    I('v_and_b32 v28, 1, v27'); I(f'v_bfe_u32 v29, {vL}, 2, 1'); I('v_lshl_or_b32 v28, v29, 1, v28'); I(f'v_lshlrev_b32 v29, 1, {vL}'); I('v_xor_b32 v28, v28, v29')
    I('s_lshl_b32 s62, s71, 12'); I('s_add_u32 s62, s62, s88'); I('v_lshl_add_u32 v134, v28, 4, s62'); I('v_xor_b32 v135, 16, v134')
    I('s_lshl_b32 s62, s71, 11'); I('s_add_u32 s62, s62, s88'); I(f'v_add_u32 v136, s62, v{vFR}')
    I(f's_and_b32 s79, {sIDX}, 3'); I(f's_lshl_b32 s61, {sXCD}, 2'); I('s_add_u32 s79, s79, s61'); I(f's_lshr_b32 s80, {sIDX}, 2')
    I(f's_mul_i32 s61, {sW}, 11')
    I('s_mul_i32 s73, s79, 172'); I('s_add_u32 s73, s73, s61'); I('s_lshl_b32 s73, s73, 10'); I(f's_add_u32 s73, s73, {HF}')
    I('s_mul_i32 s78, s80, 172'); I('s_add_u32 s78, s78, s61'); I('s_lshl_b32 s78, s78, 10'); I(f's_add_u32 s78, s78, {WDP}')
    I(f's_cmp_eq_u32 {sW}, 3'); I(f's_cselect_b32 s72, {OOB}, 0')
    I(f'v_and_b32 v30, 7, {vL}')
    I('v_lshlrev_b32 v142, 10, v27'); I('v_lshl_add_u32 v142, v30, 4, v142'); I('v_lshlrev_b32 v143, 12, v27'); I('v_lshl_add_u32 v143, v30, 4, v143')
    I('v_mul_u32_u24 v144, 272, v26'); I('v_lshl_add_u32 v144, v25, 4, v144'); I(f'v_add_u32 v144, {sA}, v144')
    I(f's_mul_i32 s61, {sW}, {16*144}'); I('v_mul_u32_u24 v145, 144, v27'); I('v_lshl_add_u32 v145, v30, 4, v145'); I(f'v_add_u32 v146, {sA}, v145'); I('v_add_u32 v145, s61, v145')
    I(f's_mul_i32 s61, {sW}, {16*272}'); I('v_mul_u32_u24 v147, 272, v27'); I('v_lshl_add_u32 v147, v30, 5, v147'); I('v_add_u32 v147, s61, v147'); I(f'v_add_u32 v148, {2*AREA}, v147')
    I('v_mul_u32_u24 v149, 144, v169'); I(f's_lshl_b32 s61, {sW}, 5'); I('v_add3_u32 v149, v149, v168, s61')
    I('v_mul_u32_u24 v150, 144, v26'); I('v_lshl_add_u32 v150, v25, 3, v150'); I(f'v_add_u32 v150, {sA}, v150')
    I(f'v_min_u32 v28, 29, {vL}'); I('v_lshrrev_b32 v29, 1, v28'); I('v_and_b32 v28, 1, v28')
    if 'rowmap' in OPT:
        I('v_lshlrev_b32 v140, 12, v29'); I('s_bfe_u32 s61, s79, 0x10001'); I('s_lshl_b32 s61, s61, 3'); I(f's_add_u32 s61, s61, {sXCD}')
    else:
        I('v_lshrrev_b32 v140, 2, v29'); I('v_and_b32 v29, 3, v29'); I('v_lshl_add_u32 v140, v29, 6, v140'); I('v_lshlrev_b32 v140, 8, v140')
        I('s_bfe_u32 s61, s79, 0x30001'); I('s_lshl_b32 s61, s61, 3'); I('s_lshr_b32 s62, s79, 4'); I('s_lshl_b32 s62, s62, 2'); I('s_add_u32 s61, s61, s62')
    I('v_lshl_add_u32 v140, v28, 3, v140')
    I('s_lshl_b32 s61, s61, 8'); I('s_and_b32 s62, s79, 1'); I('s_lshl_b32 s62, s62, 7'); I('s_add_u32 s61, s61, s62'); I(f's_add_u32 s61, s61, {FL2}'); I('v_add_u32 v140, s61, v140')
    I(f'v_lshrrev_b32 v28, 1, {vL}'); I('v_lshlrev_b32 v141, 11, v28'); I(f'v_and_b32 v28, 1, {vL}'); I('v_lshl_add_u32 v141, v28, 3, v141')
    I('s_lshl_b32 s61, s80, 8'); I('s_lshr_b32 s62, s79, 4'); I('s_lshl_b32 s62, s62, 7'); I('s_add_u32 s61, s61, s62'); I(f's_add_u32 s61, s61, {FL3}'); I('v_add_u32 v141, s61, v141')
    I('s_lshl_b32 s36, s2, 5'); I(f's_add_u32 s36, s36, {FL1}'); I(f's_cmp_eq_u32 {sW}, 0'); I(f's_cselect_b32 s36, s36, {OOB}')
    I(f's_or_b32 s39, s2, {sW}'); I('s_cmp_eq_u32 s39, 0'); I(f's_cselect_b32 s39, 0, {OOB}')
    I('s_lshl_b32 s61, s2, 8'); I('s_lshl_b32 s62, s86, 7'); I('s_lshl_b32 s63, s71, 3'); I('s_add_u32 s37, s61, s62'); I('s_add_u32 s37, s37, s63'); I(f's_add_u32 s37, s37, {FL2}')
    I('s_lshl_b32 s62, s71, 7'); I('s_lshl_b32 s63, s86, 3'); I('s_add_u32 s38, s61, s62'); I('s_add_u32 s38, s38, s63'); I(f's_add_u32 s38, s38, {FL3}')
    I('v_lshrrev_b32 v28, 1, v0'); I('v_and_b32 v29, 1, v0'); I('v_lshlrev_b32 v151, 13, v28'); I('v_lshl_add_u32 v151, v29, 4, v151')
    I(f'v_mul_u32_u24 v152, {2*AREA}, v29'); I('v_lshl_add_u32 v152, v28, 4, v152')
    I(f's_lshl_b32 s40, {sCP}, 5'); I(f's_add_u32 s40, s40, {XT}'); I(f's_add_u32 s41, s40, {128*8192}')
    I('v_lshlrev_b32 v153, 5, v0'); I(f'v_add_u32 v153, {FL1}, v153')
    I(f'v_min_u32 v154, {47*16}, v{vFR}'); I(f'v_add_u32 v155, {sA}, v154'); I(f'v_add_u32 v156, {CSQ}, v154'); I(f'v_add_u32 v157, {2*AREA}, v156')
    I(f'v_and_b32 v158, 48, {vL}'); I(f'v_add_u32 v158, {sA}, v158'); I('s_lshl_b32 s61, s71, 8'); I('v_add_u32 v159, s61, v158')
    I('v_lshlrev_b32 v137, 3, v26')
    I(f's_lshl_b32 s74, {sFT}, 4'); I(f's_add_u32 s74, s74, {sTT}'); I('s_mul_i32 s74, s74, 768'); I(f's_lshl_b32 s61, {sW}, 6'); I('s_add_u32 s74, s74, s61'); I(f's_add_u32 s74, s74, {CSP}')
    I(f's_lshl_b32 s76, {sFT}, 2'); I(f's_add_u32 s76, s76, {sW}'); I('s_mul_i32 s76, s76, 3072'); I(f's_add_u32 s76, s76, {CSP}')
    I('s_lshl_b32 s77, s87, 8'); I(f's_add_u32 s77, s77, {STATS}'); I('s_xor_b32 s81, s77, 256')
    I('s_lshl_b32 s82, s69, 4'); I(f's_add_u32 s82, s82, {STATS}'); I(f's_add_u32 s100, s70, {XT}')
    I('s_mul_i32 s83, s87, 86'); I('s_xor_b32 s61, s87, 1'); I('s_mul_i32 s84, s61, 86'); I('s_lshr_b32 s61, s68, 6')
    I('s_add_u32 s83, s83, s61'); I('s_add_u32 s84, s84, s61'); I('s_add_u32 s85, s83, 2'); I('s_add_u32 s83, s83, s71'); I('s_add_u32 s84, s84, s71')
    I('s_lshl_b32 s83, s83, 10'); I('s_lshl_b32 s84, s84, 10'); I('s_lshl_b32 s85, s85, 10')
    I(f's_cmp_ge_u32 {sFT}, 14'); I(f's_cselect_b32 s61, {OOB}, {HF}'); I('s_add_u32 s83, s83, s61'); I('s_add_u32 s84, s84, s61')
    I(f's_cmp_eq_u32 {sFT}, 15'); I(f's_cselect_b32 s61, {OOB}, {HF}'); I('s_add_u32 s85, s85, s61')
    I(f's_add_u32 s87, s70, {AT}')
    I('s_mov_b32 s101, 0')
    a.wait(trow)
    I(f's_add_u32 m0, {sA}, {RPS}')
    ex = []
    for q in range(4):
        ex.append(f'buffer_load_dwordx4 v{196+q}, {SRD_WD}, s75 offen offset:{q*1024} lds')
    ex += ['global_load_ushort v250, v248, s[18:19]', 'global_load_ushort v251, v248, s[20:21]', 'global_load_ushort v252, v248, s[22:23]',
           'global_load_ushort v253, v248, s[24:25]', 'global_load_ushort v254, v247, s[26:27]']
    tk = {}
    def lp(): tk['par'] = I('global_load_ushort v255, v247, s[28:29]')
    d1 = ex + [lp] + dma(1)
    def pop(n):
        for _ in range(n):
            if d1: run(a, [d1.pop(0)])
    for r in range(4):
        for acc, x, y in ((184, 160, None), (185, 164, None), (186, 160, 160), (187, 164, 164)):
            yy = 'v188' if y is None else f'v{y+r}'
            I(f'v_dot2_f32_bf16 v{acc}, v{x+r}, {yy}, ' + ('0' if r == 0 else f'v{acc}'))
        pop(1)
    pop(2)
    I('v_permlane32_swap_b32 v184, v185'); I('v_permlane32_swap_b32 v186, v187'); pop(1)
    I('v_add_f32 v184, v184, v185'); I('v_add_f32 v186, v186, v187'); pop(2)
    I('v_permlane16_swap_b32 v184, v186'); I('v_add_f32 v184, v184, v186')
    for sh in (8, 4, 2, 1):
        pop(2); I(f'v_add_f32_dpp v184, v184, v184 row_ror:{sh} row_mask:0xf bank_mask:0xf')
    I('v_mov_b32 v185, v184'); pop(2)
    I('v_permlane16_swap_b32 v184, v185')
    I(f'v_mul_f32 v184, {f32(1/512)}, v184'); I(f'v_mul_f32 v185, {f32(1/512)}, v185')
    I('v_fma_f32 v185, -v184, v184, v185'); I('v_max_f32 v185, 0, v185'); I('v_cvt_pk_bf16_f32 v185, v185, v184')
    I('v_and_b32 v184, 0xffff0000, v185'); I('v_lshlrev_b32 v185, 16, v185')
    I(f'v_add_f32 v185, {f32(1e-5)}, v185'); run(a, rbf('v185', 'v185'))
    I('v_sqrt_f32 v185, v185'); I('v_xor_b32 v184, 0x80000000, v184'); run(a, rbf('v185', 'v185'))
    I('v_rcp_f32 v186, v185'); pop(1); I('v_mul_f32 v187, v184, v186'); pop(1)
    I('v_readlane_b32 s30, v186, 0'); I('v_readlane_b32 s32, v186, 32'); I('v_readlane_b32 s31, v187, 0'); I('v_readlane_b32 s33, v187, 32')
    I('s_mov_b32 exec_lo, 1'); I('s_mov_b32 exec_hi, 1'); I(f'buffer_store_dwordx2 v[184:185], v170, {SRD_WS}, s82 offen sc1'); I('s_mov_b64 exec, -1')
    for rw in range(2):
        for r in range(4):
            I(f'v_lshlrev_b32 v{168+8*rw+2*r}, 16, v{160+4*rw+r}'); I(f'v_and_b32 v{169+8*rw+2*r}, 0xffff0000, v{160+4*rw+r}')
        pop(2)
    for rw in range(2):
        sp = f's[{30+2*rw}:{31+2*rw}]'
        for r in range(4):
            t = 168 + 8 * rw + 2 * r
            I(f'v_pk_fma_f32 v[{t}:{t+1}], v[{t}:{t+1}], {sp}, {sp} op_sel:[0,0,1] op_sel_hi:[1,0,1]')
        pop(2)
        for r in range(4): I(f'v_cvt_pk_bf16_f32 v{160+4*rw+r}, v{168+8*rw+2*r}, v{169+8*rw+2*r}')
        I(f'ds_write_b128 v192, v[{160+4*rw}:{163+4*rw}] offset:{1088*rw}')
    pop(99)
    I('s_waitcnt lgkmcnt(0)'); a.lg_done = a.lg_n
    I('s_mul_i32 s58, s58, 0x9e3779b5'); I('s_add_u32 s58, s58, 0x7f4a7c15'); I('s_mul_i32 s59, s59, 0x85ebca6d'); I('s_add_u32 s59, s59, 0x2545f491')
    stamp(a, 1)
    st = {}; tF = {}; tX = {}; wdt = {}
    def rdF(s, i):
        sl = ((s >> 1) % 3) * SLOT + (s & 1) * 3072
        base = (vTO if i < 4 else vTS) + (i & 3); d = WFR + 4 * i
        def f(hf): tF[i] = I(f'ds_read_b64_tr_b16 a[{d+2*hf}:{d+2*hf+1}], v{base} offset:{sl + hf*768}')
        return [lambda: f(0), lambda: f(1)]
    def rdX(s):
        sl = ((s >> 1) % 3) * SLOT; L = []
        for i in range(4):
            d = XFR + 16 * (s & 1) + 4 * i
            def f(i=i, d=d): tX[s] = I(f'ds_read_b128 a[{d}:{d+3}], v{vXR + 2*(i>>1) + (s&1)} offset:{sl + (i&1)*2048}')
            L.append(f)
        return L
    def accreg(i, j): return ACC + (16 * i + 4 * j if i < 4 else 64 + 8 * (i - 4) + 4 * j)
    def tok(name, ins):
        def f(): tk[name] = I(ins)
        return f
    W = lambda name: (lambda: a.wait(tk[name]))
    a.wait(dt[0]); I('s_barrier')
    stamp(a, 11)
    run(a, rdX(0))
    for i in range(8): run(a, rdF(0, i))
    I('v_mov_b32 v28, s58'); I('v_mov_b32 v29, s59'); I('v_mov_b32 v30, 0')
    pin = {s: [] for s in range(16)}
    def cs_st():
        I('s_mov_b32 exec_lo, 0x10001'); I('s_mov_b32 exec_hi, 0x10001')
        for b in range(3): I(f'buffer_store_dwordx4 a[{36+4*b}:{39+4*b}], {vL}, {SRD_WS}, s74 offen offset:{256*b} sc1')
        I('s_mov_b64 exec, -1')
    d2 = dma(2)
    pin[0] = [tok('cf', f'ds_read_b64_tr_b16 a[{24+4*b+2*hf}:{25+4*b+2*hf}], v195 offset:{b*64 + hf*768}') for b in range(3) for hf in range(2)] + \
             [tok('xt', f'ds_read_b64_tr_b16 a[{16+4*i+2*hf}:{17+4*i+2*hf}], v{193+hf} offset:{128*i}') for i in range(2) for hf in range(2)] + d2[:9] + \
             [W('xt')] + [f'v_mfma_f32_16x16x32_bf16 a[{36+4*b}:{39+4*b}], a[{24+4*b}:{27+4*b}], v[188:191], 0' for b in range(3)] + \
             [f'buffer_store_dwordx4 a[{16+4*i}:{19+4*i}], v{vFR}, {SRD_WS}, s100 offen offset:{1024*i} sc1' for i in range(2)] + d2[9:]
    rp = [tok('rp', f'ds_read_b64_tr_b16 a[{4*ci+2*hf}:{4*ci+2*hf+1}], v{200+ci} offset:{RPS + 2048*hf}') for ci in range(4) for hf in range(2)]
    rps = [tok('p0', f'buffer_store_dwordx4 a[{4*ci}:{4*ci+3}], v{vFR+ci}, {SRD_WS}, s89 offen sc1') for ci in range(4)]
    pin[1] = rp + [(6, cs_st), W('rp')] + rps
    for n in range(1, 6):
        d = dma(n + 2); pin[2*n-1] += d[:9]; pin[2*n] += d[9:]
    pin[3] = [flagst(a, 's36')] + pin[3]
    PI = opt('pollstep', 7)
    pin[PI] = [lambda: tk.__setitem__('p1', poll_issue(a, 'v153', 26, '0'))] + pin[PI]
    pre_barrier = {2: [W('p0')], 5: [lambda: stamp(a, 12), lambda: poll_check(a, tk['p1'], 'v153', 26, '0'), lambda: stamp(a, 13)]}
    pin[9] = [tok('cs', f'buffer_load_dwordx4 v[{176+4*p}:{179+4*p}], v154, {SRD_WS}, s76 offen offset:{768*p} sc1') for p in range(4)] + pin[9]
    pin[10] += [tok('xs', f'buffer_load_dwordx4 a[{240+4*i}:{243+4*i}], v151, {SRD_WS}, s{40+i} offen sc1') for i in range(2)]
    pin[11] += [tok('st', f'buffer_load_dwordx2 v[{160+4*i}:{161+4*i}], v137, {SRD_WS}, {"s77" if i < 2 else "s81"} offen offset:{128*(i&1)} sc1') for i in range(4)] + [flagst(a, 's39')]
    WL = frag_loads(a, wdreg, 's78', wdt)
    c1 = -2.0 * math.sqrt(2.0 / math.pi) * math.log2(math.e)
    add3 = [f'v_add_f32 v{176+i}, v{176+i}, v{180+i}' for i in range(4)] + [f'v_add_f32 v{184+i}, v{184+i}, v{188+i}' for i in range(4)] + [f'v_add_f32 v{176+i}, v{176+i}, v{184+i}' for i in range(4)]
    pin[11] += WL[0:2]
    pin[12] += ilv([W('cs')] + add3 + [f'ds_write_b128 v155, v[176:179] offset:{CSQ}'], WL[2:7])
    pin[13] += ilv([tok('cq', f'ds_read_b128 v[{176+4*p}:{179+4*p}], v{156 + (p>>1)} offset:{(p&1)*AREA}') for p in range(4)] +
                   [W('xs'), f'ds_write_b128 v152, a[240:243] offset:{XSO+480}', f'ds_write_b128 v152, a[244:247] offset:{XSO+480+2048}'], WL[7:12])
    pin[14] += ilv([W('cq')] + add3 + [f'ds_write_b128 v155, v[176:179] offset:{CSF}'], WL[12:17])
    stc = [W('st')]
    for i in range(4):
        b = 160 + 4 * i
        stc += [f'v_rcp_f32 v{b+2}, v{b+1}', f'v_mul_f32 v{b+1}, v{b+1}, v{b+1}', f'v_mul_f32 v{b+3}, v{b+2}, v{b+2}', f'v_mul_f32 v{b+2}, {f32(c1)}, v{b+2}',
                f'v_mul_f32 v{b+3}, v{b+3}, v{b+2}', f'v_mul_f32 v{b+3}, {f32(0.044715)}, v{b+3}']
    CS = 192
    csf = [tok('cf', f'ds_read_b128 v[{CS+4*i}:{CS+4*i+3}], v{159 if i < 4 else 158} offset:{CSF + (i&3)*64 + (0 if i < 4 else 512)}') for i in range(8)]
    x15 = csf + stc
    pin[15] += [y for k in range(6) for y in x15[6*k:6*k+6] + [WL[17+k]]]
    KA_, KB_ = kgen(a, tk['par'])
    bgs = [(KA_, list(range(2, 11))), (KB_, list(range(11, 15)))]
    bgq = {s: [] for s in range(16)}
    for L, steps in bgs:
        tot = sum(wt(x) for x in L) + sum(sum(wt(x) for x in pin[s]) + (6 if s & 1 else 0) for s in steps)
        per = tot / len(steps); L = list(L)
        for s in steps:
            room = per - sum(wt(x) for x in pin[s]) - (6 if s & 1 else 0)
            while L and (room > 0 or s == steps[-1]):
                x = L.pop(0); room -= wt(x); bgq[s].append(x)
    order = [(i, j) for i in range(4) for j in range(4)] + [(i, j) for i in range(4, 8) for j in range(2)]
    for s in range(16):
        last = s == 15
        bar = (s & 1) and not last
        P = list(pin[s]); B = list(bgq[s]); must = []
        g0 = 3 if bar else 0
        totw = sum(wt(x) for x in P + B) + (0 if last else 20)
        cap = max(2.0, totw / (24 - g0)); used = 0.0; np0 = len(P)
        if 'kst' in OPT: I(f's_memtime s[{16+2*(s&1)*13}:{17+2*(s&1)*13}]')
        a.wait(tF[3], tX[s]); tF7 = tF[7]
        for n, (i, j) in enumerate(order):
            if n == 16: a.wait(tF7)
            d = accreg(i, j); x = XFR + 16 * (s & 1) + 4 * j
            cc = '0' if s == 0 else f'v[{d}:{d+3}]'
            I(f'v_mfma_f32_16x16x32_bf16 v[{d}:{d+3}], a[{WFR+4*i}:{WFR+4*i+3}], a[{x}:{x+3}], {cc}')
            if bar and n == 3:
                nb = (s + 1) >> 1
                run(a, pre_barrier.get(nb, []))
                a.wait(dt[nb], ('lg', a.lg_n)); I('s_barrier')
                if 'kst' in OPT:
                    I('s_waitcnt lgkmcnt(0)')
                    for z, r in enumerate((16, 17, 42, 43)): I(f'v_writelane_b32 v31, s{r}, {2*(s-1)+z}')
            if not last:
                if j == (3 if i < 4 else 1): must += rdF(s + 1, i)
                if n == 4: must += rdX(s + 1)
            if n < g0: continue
            budget = cap * (n - g0 + 1)
            while True:
                pdue = P and (np0 - len(P)) < np0 * (n - g0 + 1) / (24 - g0)
                if must: x = must.pop(0)
                elif used + 1 > budget + 1e-9: break
                elif pdue: x = P.pop(0)
                elif B: x = B.pop(0)
                else: break
                run(a, [x]); used += wt(x)
                if used + 1 > budget + 1e-9 and not (must and len(must) & 1): break
        run(a, must); run(a, P); run(a, B)
    if 'kst' in OPT:
        I('s_waitcnt lgkmcnt(0)')
        for z in range(2): I(f'v_writelane_b32 v31, s{16+z}, {28+z}')
        I('s_memtime s[98:99]'); I('s_waitcnt lgkmcnt(0)'); I('v_writelane_b32 v31, s98, 30'); I('v_writelane_b32 v31, s99, 31')
    stamp(a, 2)
    a.wait(tk['cf']); I('s_barrier')
    WR = WL[23:]
    T = 224
    for n in range(6):
        i0, j = (0, n) if n < 4 else (4, n - 4)
        cst = 160 + 4 * j; mS = f'v[{cst}:{cst+1}]'; cC = f'v[{cst+2}:{cst+3}]'
        G = [accreg(i0, j), accreg(i0, j) + 2, accreg(i0 + 2, j), accreg(i0 + 2, j) + 2]
        U = [accreg(i0 + 1, j), accreg(i0 + 1, j) + 2, accreg(i0 + 3, j), accreg(i0 + 3, j) + 2]
        CG = [CS + 4 * i0, CS + 4 * i0 + 2, CS + 4 * i0 + 8, CS + 4 * i0 + 10]; CU = [c + 4 for c in CG]
        t = T + 16 * (n & 1); o = t + 8
        P = lambda r: f'v[{r}:{r+1}]'
        def wl():
            if WR and n < opt('gelu_wl', 6): run(a, [WR.pop(0)])
        for k in range(4): I(f'v_pk_fma_f32 {P(G[k])}, {P(CG[k])}, {mS}, {P(G[k])} op_sel_hi:[1,0,1]')
        for k in range(4): I(f'v_pk_mul_f32 {P(t+2*k)}, {P(G[k])}, {P(G[k])}')
        for k in range(4): I(f'v_pk_fma_f32 {P(t+2*k)}, {P(t+2*k)}, {cC}, {cC} op_sel:[0,1,0] op_sel_hi:[1,1,0]')
        for k in range(4): I(f'v_pk_mul_f32 {P(t+2*k)}, {P(t+2*k)}, {P(G[k])}')
        wl()
        for k in range(8): I(f'v_exp_f32 v{t+k}, v{t+k}')
        for k in range(4): I(f'v_pk_fma_f32 {P(U[k])}, {P(CU[k])}, {mS}, {P(U[k])} op_sel_hi:[1,0,1]')
        wl()
        for k in range(4): I(f'v_pk_fma_f32 {P(t+2*k)}, {P(t+2*k)}, {mS}, {mS} op_sel:[0,1,1] op_sel_hi:[1,1,1]')
        for k in range(8): I(f'v_rcp_f32 v{t+k}, v{t+k}')
        wl()
        for k in range(4): I(f'v_pk_mul_f32 {P(G[k])}, {P(G[k])}, {P(U[k])}')
        for k in range(4): I(f'v_pk_mul_f32 {P(G[k])}, {P(G[k])}, {P(t+2*k)}')
        for k in range(4): I(f'v_cvt_pk_bf16_f32 v{o+k}, v{G[k]}, v{G[k]+1}')
        so = 's83' if n < 2 else ('s84' if n < 4 else 's85')
        st['h'] = I(f'buffer_store_dwordx4 v[{o}:{o+3}], v{vFR + (n&1)}, {SRD_WS}, {so} offen {hsc}')
    stamp(a, 3)
    ht = {}
    HL = frag_loads(a, hreg, 's73', ht)
    CA, AF, BF = 32, 64, 96
    tA = {}; tB = {}
    def rdA(q, r):
        kk, z = (7 - q) >> 1, (7 - q) & 1; o = (512 * z + 64 * (3 - r)) // 4; d = AF + 4 * q
        I(f'ds_read2_b32 v[{d}:{d+1}], v{129+kk} offset0:{o} offset1:{o+1}')
        tA[q] = I(f'ds_read2_b32 v[{d+2}:{d+3}], v{129+kk} offset0:{o+2} offset1:{o+3}')
    def rdB(m, r):
        d = BF + 4 * m
        tB[m] = I(f'ds_read_b128 v[{d}:{d+3}], v128 offset:{XSO + 64*(3-r) + 512*m}')
    for i in range(8): rdA(7 - i, 0); rdB(i, 0)
    seen = set(); cnt = 0
    PUB, POL, CHK = opt('pub2', 72), opt('pol2', 140), opt('chk2', 999)
    hgo = False
    sc2 = ['s_lshl_b32 s82, s79, 2', f's_add_u32 s82, s82, {sW}', 's_lshl_b32 s82, s82, 14', 's_lshl_b32 s83, s80, 7', 's_add_u32 s82, s82, s83', 's_add_u32 s83, s82, 8192',
           's_lshl_b32 s84, s80, 2', f's_add_u32 s84, s84, {sW}', 's_lshl_b32 s84, s84, 16', 's_lshl_b32 s85, s79, 7', 's_add_u32 s84, s84, s85', f's_add_u32 s84, s84, {AT}', 's_add_u32 s85, s84, 32768']
    for r in range(4):
        for q in range(7, -1, -1):
            for m in range(8 - q):
                a.wait(tA[q], tB[m])
                i = q + m; d = CA + 4 * i
                cc = f'v[{d}:{d+3}]' if i in seen else '0'
                seen.add(i)
                I(f'v_mfma_f32_16x16x32_bf16 v[{d}:{d+3}], v[{AF+4*q}:{AF+4*q+3}], v[{BF+4*m}:{BF+4*m+3}], {cc}')
                if q == 0 and r < 3: rdB(m, r + 1)
                cnt += 1
                if cnt == PUB: a.wait(st['h']); run(a, [flagst(a, 's37', hsc)]); stamp(a, 4)
                elif cnt == POL: tp2 = poll_issue(a, 'v140', 26, '0')
                elif cnt == CHK: poll_check(a, tp2, 'v140', 26, '0'); hgo = True; stamp(a, 5)
                elif cnt % 5 == 0 and WR: run(a, [WR.pop(0)])
                elif cnt % 5 == 0 and hgo: run(a, [HL.pop(0)])
                elif r == 3 and sc2: I(sc2.pop(0))
            if r < 3: rdA(q, r + 1)
    assert not WR and not sc2
    stamp(a, 6)
    for i in range(8): I(f'ds_write_b128 v133, v[{CA+4*i}:{CA+4*i+3}] offset:{1024*i}')
    if not hgo:
        poll_check(a, tp2, 'v140', 26, '0'); stamp(a, 5)
        run(a, HL[:8]); HL = HL[8:]
    a.wait_all(vm=False); I('s_barrier')
    for n in range(2):
        for pw in range(2):
            for z in range(2):
                d = 64 + 16 * n + 8 * pw + 4 * z
                I(f'ds_read_b128 v[{d}:{d+3}], v{134+z} offset:{pw*AREA + 2048*n}')
        I(f'ds_read_b128 v[{96+4*n}:{99+4*n}], v136 offset:{XSO + 480 + 1024*n}')
    run(a, HL[:2]); HL = HL[2:]
    a.wait_all(vm=False)
    PK = lambda r: f'v[{r}:{r+1}]'
    for n in range(2):
        y = 64 + 16 * n
        for i in range(4): I(f'v_pk_add_f32 {PK(y+2*i)}, {PK(y+2*i)}, {PK(y+8+2*i)}')
        for i in range(4):
            I(f'v_lshlrev_b32 v{y+8+2*i}, 16, v{96+4*n+i}'); I(f'v_and_b32 v{y+9+2*i}, 0xffff0000, v{96+4*n+i}')
        for i in range(4): I(f'v_pk_fma_f32 {PK(y+2*i)}, {PK(y+8+2*i)}, v[138:139], {PK(y+2*i)} op_sel:[0,1,0] op_sel_hi:[1,1,1]')
        for i in range(4): I(f'v_cvt_pk_bf16_f32 v{104+4*n+i}, v{y+2*i}, v{y+2*i+1}')
        st['a'] = I(f'buffer_store_dwordx4 v[{104+4*n}:{107+4*n}], v{vFR}, {SRD_WS}, s87 offen offset:{1024*n} sc1')
    stamp(a, 7)
    AC = 32; ATL = XSO; T2 = M
    cnt = 0
    def need(n):
        nonlocal HL
        while n not in ht or (44 - len(HL)) < 4 * (n + 1): run(a, [HL.pop(0)])
        a.wait(wdt[n], ht[n])
    for n in range(11):
        if n == opt('pub3', 2): a.wait(st['a']); run(a, [flagst(a, 's38')])
        if n == 4: I('s_barrier')
        if n == 9:
            run(a, HL); HL = []
            I(f'buffer_load_dwordx4 v[112:115], v142, {SRD_X}, s82 offen'); I(f'buffer_load_dwordx4 v[116:119], v142, {SRD_X}, s83 offen')
        if n == 10: tp3 = poll_issue(a, 'v141', 26, '0')
        need(n)
        for ci in range(4):
            for ti in range(4):
                d = AC + 16 * ci + 4 * ti
                cc = '0' if n == 0 else f'v[{d}:{d+3}]'
                I(f'v_mfma_f32_16x16x32_bf16 v[{d}:{d+3}], {wdreg(n,ci)}, {hreg(n,ti)}, {cc}')
                cnt += 1
                if cnt % 4 == 0 and HL: run(a, [HL.pop(0)])
    stamp(a, 8)
    for ci in range(4):
        for ti in range(4):
            d = AC + 16 * ci + 4 * ti
            I(f'ds_write_b128 v144, v[{d}:{d+3}] offset:{ti*16*272 + ci*64}')
    poll_check(a, tp3, 'v141', 26, '0')
    I(f'buffer_load_dwordx4 v[120:123], v143, {SRD_WS}, s84 offen sc1'); tat = I(f'buffer_load_dwordx4 v[124:127], v143, {SRD_WS}, s85 offen sc1')
    a.wait_all(vm=False); I('s_barrier')
    for n in range(2):
        for v in range(4):
            for z in range(2):
                d = 32 + 32 * n + 8 * v + 4 * z
                I(f'ds_read_b128 v[{d}:{d+3}], v{147 + (v>>1)} offset:{(v&1)*AREA + n*8*272 + z*16}')
    for n in range(2):
        for i in range(4):
            I(f'v_lshlrev_b32 v{96+8*n+2*i}, 16, v{112+4*n+i}'); I(f'v_and_b32 v{97+8*n+2*i}, 0xffff0000, v{112+4*n+i}')
    a.wait_all(vm=False)
    for n in range(2):
        y = 32 + 32 * n
        for i in range(4): I(f'v_pk_add_f32 {PK(y+2*i)}, {PK(y+2*i)}, {PK(y+8+2*i)}')
        for i in range(4): I(f'v_pk_add_f32 {PK(y+16+2*i)}, {PK(y+16+2*i)}, {PK(y+24+2*i)}')
        for i in range(4): I(f'v_pk_add_f32 {PK(y+2*i)}, {PK(y+2*i)}, {PK(96+8*n+2*i)}')
        for i in range(4): I(f'v_pk_add_f32 {PK(y+2*i)}, {PK(y+2*i)}, {PK(y+16+2*i)}')
    stamp(a, 9)
    a.wait(tat)
    I(f'ds_write_b128 v145, v[120:123] offset:{ATL}'); I(f'ds_write_b128 v145, v[124:127] offset:{ATL + 8*144}')
    a.wait_all(vm=False); I('s_barrier')
    for n in range(4): I(f'ds_read_b64_tr_b16 v[{120+2*n}:{121+2*n}], v149 offset:{ATL + n*16*144}')
    a.wait_all(vm=False)
    for n in range(4): I(f'ds_write_b64 v150, v[{120+2*n}:{121+2*n}] offset:{T2 + n*32}')
    for n in range(2): I(f'ds_read_b128 v[{112+4*n}:{115+4*n}], v146 offset:{T2 + n*8*144}')
    a.wait_all(vm=False)
    for n in range(2):
        y = 32 + 32 * n
        for i in range(4):
            I(f'v_lshlrev_b32 v{y+8+2*i}, 16, v{112+4*n+i}'); I(f'v_and_b32 v{y+9+2*i}, 0xffff0000, v{112+4*n+i}')
        for i in range(4): I(f'v_pk_add_f32 {PK(y+2*i)}, {PK(y+2*i)}, {PK(y+8+2*i)}')
        for i in range(4): I(f'v_cvt_pk_bf16_f32 v{y+16+i}, v{y+2*i}, v{y+2*i+1}')
        I(f'buffer_store_dwordx4 v[{y+16}:{y+19}], v142, {SRD_OUT}, s{82+n} offen')
    flush_stamps(a, 10)
    a.label(END); I('s_endpgm')
    for x in a.tail: a.raw(x)

def main(out):
    a = Asm(); gen(a)
    txt = a.finish()
    name = NAME + '_kernel'
    s = '; generated by gen/gen3.py\n; @launch grid=(256,1,1) block=(256,1,1) lds=163840\n'
    s += f'.amdgcn_target "amdgcn-amd-amdhsa--gfx950"\n.text\n.globl {name}\n.p2align 8\n.type {name},@function\n{name}:\n' + txt
    s += f'.fill (33024 - (. - {name})) / 4, 4, 0xbf800000\n'
    s += f'''.section .rodata,"a"
.p2align 6
.amdhsa_kernel {name}
  .amdhsa_next_free_vgpr 512
  .amdhsa_next_free_sgpr 102
  .amdhsa_accum_offset 256
  .amdhsa_group_segment_fixed_size 0
  .amdhsa_kernarg_size 112
  .amdhsa_user_sgpr_count 2
  .amdhsa_user_sgpr_kernarg_segment_ptr 1
  .amdhsa_system_sgpr_workgroup_id_x 1
.end_amdhsa_kernel
'''
    open(out, 'w').write(s)
    print('nops inserted', a.nops, 'lines', len(a.L))

if __name__ == '__main__':
    for x in sys.argv[2:]:
        k, _, v = x[2:].partition('=')
        OPT[k] = int(v) if v else True
    main(sys.argv[1])
```
